```python
import torch

def _softmax(x, axis=-1):
    return torch.softmax(x, dim=axis)
def _gelu(x):
    return torch.nn.functional.gelu(x, approximate="tanh")
def _silu(x):
    return torch.nn.functional.silu(x)
def _sigmoid(x):
    return torch.sigmoid(x)
def _layernorm(x, axis=-1, eps=1e-5):
    m = x.mean(dim=axis, keepdim=True)
    v = x.var(dim=axis, keepdim=True, unbiased=False)
    return (x - m) / torch.sqrt(v + eps)
def _scatter_add(tgt, idx, src, axis=0):
    return tgt.clone().index_add_(axis, idx, src)
def _segment_sum(src, seg, n):
    out = torch.zeros((n,) + src.shape[1:], dtype=src.dtype)
    return out.index_add_(0, seg, src)
def _pad(x, pw):
    flat = tuple(v for pair in reversed(pw) for v in pair)
    return torch.nn.functional.pad(x, flat)

kernel_name = 'recurrent_scan__sliding_block__dense_activation_relu__prompt'

def setup_inputs():

    _w = (lambda a: (lambda t: t.to(torch.bfloat16) if t.is_floating_point() else t)(torch.as_tensor(a)))
    def _A_setup():
        B, S, D = 1, 2048, 512
        return {
            "x": _w((lambda *s: torch.randn(*s, dtype=torch.bfloat16) * 0.05)(B, S, D)),
            "wqkv": _w((lambda *s: torch.randn(*s, dtype=torch.bfloat16) * 0.05)(D, 3 * D)),
            "wo": _w((lambda *s: torch.randn(*s, dtype=torch.bfloat16) * 0.05)(D, D)),
        }
    _A_in = _A_setup()

    def _B_setup():
        B, S, D, Dff = 1, 2048, 512, 1792
        return {
            "x": _w((lambda *s: torch.randn(*s, dtype=torch.bfloat16) * 0.05)(B, S, D)),
            "w1": _w((lambda *s: torch.randn(*s, dtype=torch.bfloat16) * 0.05)(D, Dff)),
            "w2": _w((lambda *s: torch.randn(*s, dtype=torch.bfloat16) * 0.05)(Dff, D)),
        }
    _B_in = _B_setup()

    return {
        "A_x": _A_in["x"],
        "A_wqkv": _A_in["wqkv"],
        "A_wo": _A_in["wo"],
        "B_x": _B_in["x"],
        "B_w1": _B_in["w1"],
        "B_w2": _B_in["w2"],
    }

def reference(A_x, A_wqkv, A_wo, B_x, B_w1, B_w2):
    def _A_ref(x, wqkv, wo):
        B, S, D = x.shape
        H = 32; Dh = D // H; W = 256
        qkv = (lambda x, *d: x.permute(*d))((x @ wqkv).reshape(B, S, 3, H, Dh), 2, 0, 3, 1, 4)
        q, k, v = qkv[0], qkv[1], qkv[2]
        scores = torch.einsum("bhqd,bhkd->bhqk", q, k) * (Dh ** -0.5)
        idx = torch.arange(S)
        mask = (idx[:, None] - idx[None, :] >= 0) & (idx[:, None] - idx[None, :] < W)
        scores = torch.where(mask[None, None], scores, -1e9)
        p = _softmax(scores, axis=-1)
        o = torch.einsum("bhqk,bhkd->bhqd", p, v)
        return (lambda x, *d: x.permute(*d))(o, 0, 2, 1, 3).reshape(B, S, D) @ wo

    def _B_ref(x, w1, w2):
        h = torch.einsum("bsd,df->bsf", x, w1)
        zero = torch.zeros_like(h)
        h = torch.maximum(h, zero)
        return torch.einsum("bsf,fd->bsd", h, w2)

    x = A_x
    xn = _layernorm(x, axis=-1)
    s = _A_ref(xn, A_wqkv, A_wo)
    g = _silu(_B_ref(xn, B_w1, B_w2))
    return x + s * g
```

```python
import re

class Asm:
    def __init__(self):
        self.lines = []
    def __call__(self, s):
        for l in s.split("\n"):
            l = l.strip()
            if l: self.lines.append(l)
    def label(self, n): self.lines.append(n + ":")
    def c(self, s): self.lines.append("; " + s)
    def text(self):
        out = []
        for l in self.lines:
            if l.endswith(":") or l.startswith(".") or l.startswith(";"): out.append(l)
            else: out.append("    " + l)
        return "\n".join(out) + "\n"

REG = re.compile(r"\b([vas])\[(\d+):(\d+)\]|\b([vas])(\d+)\b|\b(vcc|exec|m0|scc)\b")
def regs_of(op):
    r = set()
    for m in REG.finditer(op):
        if m.group(1):
            for i in range(int(m.group(2)), int(m.group(3)) + 1): r.add(m.group(1) + str(i))
        elif m.group(4): r.add(m.group(4) + m.group(5))
        else: r.add(m.group(6))
    return r

TRANS = ("v_exp_f32", "v_log_f32", "v_rcp_f32", "v_rsq_f32", "v_sqrt_f32", "v_sin_f32", "v_cos_f32", "v_rcp_iflag_f32")
class Ins:
    __slots__ = ("text", "op", "ops", "kind", "d", "u", "idx", "ann", "nop", "target", "mods", "passes", "srcC", "srcAB")
    def __init__(self, text, idx):
        self.idx = idx
        t, _, cm = text.partition(";")
        self.ann = cm.strip()
        t = t.strip(); self.text = t
        parts = t.split(None, 1)
        self.op = parts[0]
        rest = parts[1] if len(parts) > 1 else ""
        ops = []; cur = ""; depth = 0
        for ch in rest:
            if ch in "[(": depth += 1
            if ch in "])": depth -= 1
            if ch == "," and depth == 0: ops.append(cur.strip()); cur = ""
            else: cur += ch
        if cur.strip(): ops.append(cur.strip())
        self.mods = ""
        if ops:
            last = ops[-1].split(None, 1)
            if len(last) > 1 and not last[0].startswith("hwreg"):
                ops[-1] = last[0]; self.mods = last[1]
        self.ops = ops
        self.d = set(); self.u = set(); self.nop = 1; self.target = None
        self.passes = 0; self.srcC = set(); self.srcAB = set()
        op = self.op
        R = lambda i: regs_of(ops[i]) if i < len(ops) else set()
        if op.startswith("v_mfma"):
            self.kind = "mfma"; self.d = R(0); self.srcAB = R(1) | R(2); self.srcC = R(3); self.u = self.srcAB | self.srcC
            self.passes = 8 if "32x32" in op else 4
        elif op.startswith("v_"):
            self.kind = "valu"
            base = op.replace("_e32", "").replace("_e64", "")
            if base.startswith("v_cmp"):
                self.d = R(0); self.u = R(1) | R(2)
                if base.startswith("v_cmpx"): self.d |= {"exec"}
            elif base in ("v_permlane32_swap_b32", "v_permlane16_swap_b32", "v_swap_b32"):
                self.d = R(0) | R(1); self.u = R(0) | R(1)
            elif base in ("v_add_co_u32", "v_sub_co_u32", "v_subrev_co_u32"):
                self.d = R(0) | R(1); self.u = R(2) | R(3)
            elif base in ("v_addc_co_u32", "v_subb_co_u32"):
                self.d = R(0) | R(1); self.u = R(2) | R(3) | R(4)
            else:
                self.d = R(0)
                for i in range(1, len(ops)): self.u |= R(i)
                if base in ("v_fmac_f32", "v_dot2c_f32_bf16", "v_fmac_f32", "v_writelane_b32", "v_pk_fmac_f16"): self.u |= R(0)
                if base == "v_cndmask_b32" and len(ops) == 3: self.u |= {"vcc"}
        elif op.startswith("ds_"):
            self.kind = "ds"
            if op.startswith("ds_read") or op.startswith("ds_bpermute") or op.startswith("ds_permute") or op.startswith("ds_swizzle"):
                self.d = R(0)
                for i in range(1, len(ops)): self.u |= R(i)
            else:
                for i in range(len(ops)): self.u |= R(i)
        elif op.startswith("buffer_") or op.startswith("global_"):
            self.kind = "vmem"
            islds = " lds" in (" " + self.mods) or op.startswith("global_load_lds")
            if op in ("buffer_wbl2", "buffer_inv"):
                pass
            elif "load" in op and not islds:
                self.d = R(0)
                for i in range(1, len(ops)): self.u |= R(i)
            elif "atomic" in op and "sc0" in self.mods:
                self.d = R(0)
                for i in range(len(ops)): self.u |= R(i)
            else:
                for i in range(len(ops)): self.u |= R(i)
                if islds: self.u |= {"m0"}
        elif op.startswith("s_"):
            self.kind = "salu"
            if op == "s_nop": self.nop = int(ops[0], 0) + 1
            elif op in ("s_branch",) or op.startswith("s_cbranch"): self.target = ops[0]; self.kind = "br"
            elif op in ("s_waitcnt", "s_barrier", "s_endpgm", "s_sleep", "s_setprio"): self.kind = "ctl"
            elif op.startswith("s_cmp") or op.startswith("s_bitcmp"):
                for i in range(len(ops)): self.u |= R(i)
            elif op.startswith("s_load") or op.startswith("s_memtime") or op.startswith("s_memrealtime") or op.startswith("s_buffer_load"):
                self.kind = "smem"; self.d = R(0)
                for i in range(1, len(ops)): self.u |= R(i)
            else:
                self.d = R(0)
                for i in range(1, len(ops)): self.u |= R(i)
                if op in ("s_addk_i32", "s_mulk_i32"): self.u |= R(0)
                if "saveexec" in op: self.d |= {"exec"}; self.u |= {"exec"}
        else:
            raise ValueError("unknown instr: " + text)
    def is_trans(self): return self.op.replace("_e32", "").replace("_e64", "") in TRANS
    def islds_dma(self): return self.kind == "vmem" and (" lds" in (" " + self.mods) or self.op.startswith("global_load_lds"))
    def wide_store(self): return self.kind == "vmem" and ("store" in self.op) and (self.op.endswith("x4") or self.op.endswith("x3"))

def vg(s): return {r for r in s if r[0] in "va" and r not in ("vcc",)}
def sg(s): return {r for r in s if (r[0] == "s" and r != "scc") or r in ("vcc",)}

def need(prod, cons):
    n = 0
    pv, cv_u, cv_d = vg(prod.d), vg(cons.u), vg(cons.d)
    if prod.kind == "valu":
        if cons.kind == "mfma" and pv & cv_u: n = max(n, 2)
        ps = sg(prod.d)
        if ps:
            if cons.kind == "valu" and ps & cons.u:
                n = max(n, 4 if cons.op.startswith(("v_readlane", "v_writelane")) and ps & regs_of(cons.ops[-1]) else 2)
            if cons.kind == "vmem" and ps & cons.u: n = max(n, 5)
            if cons.kind in ("salu", "br") and ps & cons.u: n = max(n, 1)
            if cons.kind == "br" and "vcc" in ps and "vcc" in cons.op: n = max(n, 1)
        if cons.kind == "valu" and cons.op.startswith(("v_readfirstlane", "v_readlane")) and pv & cv_u: n = max(n, 1)
        if cons.kind == "valu" and cons.op.startswith("v_permlane") and pv & cv_u: n = max(n, 2)
        if cons.kind == "valu" and ("dpp" in cons.op or "row_" in cons.mods or "quad_perm" in cons.mods) and pv & cv_u: n = max(n, 2)
        if prod.is_trans() and cons.kind == "valu" and not cons.is_trans() and pv & cv_u: n = max(n, 1)
        if prod.is_trans() and cons.kind == "valu" and cons.is_trans() and pv & cv_u: n = max(n, 0)
        if "exec" in prod.d and cons.kind == "mfma": n = max(n, 4)
    if prod.kind == "mfma":
        big = {8: 12, 4: 8}[prod.passes]; ovl = {8: 10, 4: 6}[prod.passes]; war = {8: 7, 4: 3}[prod.passes]
        if cons.kind == "mfma":
            if pv & cons.srcAB: n = max(n, big)
            if pv & cons.srcC and not (cons.srcC == prod.d and cons.passes == prod.passes): n = max(n, ovl)
            if pv & cons.d and not (pv & cons.srcC):
                n = max(n, ovl)
        elif cons.kind in ("valu", "ds", "vmem"):
            if pv & (cv_u | cv_d): n = max(n, big)
            if cons.kind == "valu" and (vg(prod.srcC) & cv_d): n = max(n, war)
    if prod.kind == "salu" and "m0" in prod.d and cons.kind == "vmem" and cons.islds_dma(): n = max(n, 1)
    if prod.wide_store():
        data = vg(regs_of(prod.ops[0])) if prod.op.startswith("buffer") else vg(regs_of(prod.ops[1]))
        if cons.kind == "valu" and cv_d & data: n = max(n, 2)
        elif cons.kind in ("ds", "vmem") and cv_d & data: n = max(n, 1)
    return n

def parse(lines):
    ins = []; labels = {}
    for l in lines:
        l = l.strip()
        if not l or l.startswith(";"): continue
        if l.startswith("."):
            continue
        if re.match(r"^[\w.$]+:$", l):
            labels[l[:-1]] = len(ins); continue
        ins.append(Ins(l, len(ins)))
    return ins, labels

def check_hazards(lines, verbose=True):
    ins, labels = parse(lines)
    preds = [[] for _ in range(len(ins) + 1)]
    for i, x in enumerate(ins):
        if x.op == "s_endpgm": continue
        if x.kind == "br":
            t = labels.get(x.target)
            if t is not None: preds[t].append(i)
            if x.op != "s_branch": preds[i + 1].append(i)
        else:
            preds[i + 1].append(i)
    probs = []
    MAXW = 13
    for i, c in enumerate(ins):
        if c.kind in ("ctl", "br") and not c.u: continue
        stack = [(p, 0) for p in preds[i]]
        seen = {}
        while stack:
            p, w = stack.pop()
            if w >= MAXW: continue
            if seen.get(p, 99) <= w: continue
            seen[p] = w
            pr = ins[p]
            nd = need(pr, c)
            if nd > w: probs.append((pr, c, nd, w))
            for q in preds[p]: stack.append((q, w + pr.nop))
    if verbose:
        for pr, c, nd, w in probs:
            print(f"HAZARD need {nd} have {w}: [{pr.idx}] {pr.text}  ->  [{c.idx}] {c.text}")
    return probs

def trace_check(lines, decide, max_steps=400000, verbose=True):
    ins, labels = parse(lines)
    pc = 0; steps = 0; counts = {}
    vm = []
    lg = []
    probs = []
    def pend_regs(q):
        s = {}
        for x in q:
            for r in x.d: s[r] = x
        return s
    while pc < len(ins) and steps < max_steps:
        x = ins[pc]; steps += 1
        if x.op == "s_endpgm": break
        if x.op == "s_waitcnt":
            t = x.text
            m = re.search(r"vmcnt\((\d+)\)", t)
            if m:
                n = int(m.group(1))
                while len(vm) > n: vm.pop(0)
            m = re.search(r"lgkmcnt\((\d+)\)", t)
            if m:
                n = int(m.group(1))
                if any(o.kind == "smem" for o in lg) and n > 0: probs.append(f"counted lgkmcnt with smem outstanding at [{x.idx}] {x.text}")
                while sum(2 if (o.kind == 'smem' and not o.op.endswith('dword')) else 1 for o in lg) > n and lg: lg.pop(0)
            pc += 1; continue
        touched = x.u | x.d
        for q, nm in ((vm, "vm"), (lg, "lgkm")):
            pr = pend_regs(q)
            for r in touched:
                if r in pr and not (r in x.d and r not in x.u and x.kind == pr[r].kind and x.kind in ("vmem","ds")):
                    probs.append(f"{nm} not waited: [{pr[r].idx}] {pr[r].text} -> [{x.idx}] {x.text} reg {r}")
        if x.kind == "vmem":
            vm.append(x)
            if len(vm) > 63: probs.append(f"vmcnt overflow (>63 outstanding) at [{x.idx}] {x.text}")
        if x.kind in ("ds", "smem"):
            lg.append(x)
            if len([o for o in lg]) > 15 and x.kind == "ds": pass
        if x.kind == "br":
            counts[pc] = counts.get(pc, 0) + 1
            taken = True if x.op == "s_branch" else decide(x, counts[pc])
            pc = labels[x.target] if taken else pc + 1
            continue
        pc += 1
    if verbose:
        seen = set()
        for p in probs:
            if p not in seen: print("WAITCNT:", p); seen.add(p)
    return probs, steps
```

```python
KN = "recurrent_scan__sliding_block__dense_activation_relu__prompt"
def header(launches):
    s = ""
    if len(launches) == 1 and launches[0][0] is None:
        _, g, b, l = launches[0]
        s += f"; @launch grid=({g},1,1) block=({b},1,1) lds={l}\n"
    else:
        for k, g, b, l in launches:
            s += f"; @launch kernel={k} grid=({g},1,1) block=({b},1,1) lds={l}\n"
    s += '.amdgcn_target "amdgcn-amd-amdhsa--gfx950"\n.text\n'
    return s
def kstart(name):
    return f".globl {name}\n.p2align 8\n.type {name},@function\n{name}:\n"
def kdesc(name, vgpr=512, acc=256, sgpr=96):
    return (f".p2align 6\n.amdhsa_kernel {name}\n  .amdhsa_next_free_vgpr {vgpr}\n  .amdhsa_next_free_sgpr {sgpr}\n  .amdhsa_accum_offset {acc}\n"
            f"  .amdhsa_group_segment_fixed_size 0\n  .amdhsa_kernarg_size 72\n  .amdhsa_user_sgpr_count 2\n  .amdhsa_user_sgpr_kernarg_segment_ptr 1\n"
            f"  .amdhsa_system_sgpr_workgroup_id_x 1\n  .amdhsa_float_denorm_mode_32 3\n.end_amdhsa_kernel\n")
```

```python
from parts import *
def gen_k0(a):
    prologue(a, "L_k0_end")
    fb0_of(a, 37)
    a(f"""v_lshrrev_b32 v3, 5, v0          ; blk
v_and_b32 v4, 31, v0              ; n
s_lshl_b32 s38, s5, 5
v_lshlrev_b32 v5, 9, v3
v_add_u32 v5, v5, v4
v_add_u32 v5, s38, v5
v_lshlrev_b32 v5, 1, v5           ; bytes
v_subrev_u32 v6, 3, v3
v_add_u32 v6, s37, v6
v_lshlrev_b32 v6, 5, v6
v_add_u32 v6, v6, v4
v_lshlrev_b32 v6, 1, v6
v_mov_b32 v7, 0x7ff00000
v_cmp_gt_u32 vcc, 3, v3
s_nop 1
v_cndmask_b32 v5, v7, v5, vcc
v_cmp_le_u32 vcc, 3, v3
s_nop 1
v_cndmask_b32 v6, v7, v6, vcc
v_cmp_gt_u32 vcc, 7, v3
s_nop 1
v_cndmask_b32 v6, v7, v6, vcc
s_lshl_b32 s38, s4, 5             ; row0 = 32r
s_mul_i32 s39, s38, 3072
s_mul_i32 s40, s38, 3584
v_mov_b32 v8, 0""")
    for i in range(32):
        a(f"""buffer_load_ushort v10, v5, {srd(SWQ)}, s39 offen
buffer_load_ushort v11, v6, {srd(SW1)}, s40 offen
s_add_u32 s39, s39, 3072
s_add_u32 s40, s40, 3584
s_waitcnt vmcnt(0)
v_or_b32 v10, v10, v11
v_lshlrev_b32 v10, 16, v10
v_add_f32 v8, v8, v10""")
    a(f"""s_lshl_b32 s38, s4, 4
s_add_u32 s38, s38, s5
s_lshl_b32 s38, s38, 10
s_add_u32 s38, s38, {WS_CS}
v_lshlrev_b32 v9, 2, v0
buffer_store_dword v8, v9, {srd(SWS)}, s38 offen""")
    a(f"""s_lshl_b32 s38, s4, 7
s_lshl_b32 s39, s5, 3
s_add_u32 s38, s38, s39
s_lshl_b32 s39, s6, 1
s_add_u32 s38, s38, s39           ; token0
v_lshlrev_b32 v9, 4, v1""")
    for tk in range(2):
        a(f"""s_add_u32 s39, s38, {tk}
s_lshl_b32 s40, s39, 10
buffer_load_dwordx4 v[12:15], v9, {srd(SX)}, s40 offen
s_waitcnt vmcnt(0)""")
        for j in range(4):
            a(f"v_lshlrev_b32 v{16+2*j}, 16, v{12+j}\nv_and_b32 v{17+2*j}, 0xffff0000, v{12+j}")
        a("v_add_f32 v24, v16, v17")
        for j in range(2, 8): a(f"v_add_f32 v24, v24, v{16+j}")
        allreduce_add(a, 24, 25)
        a(f"v_mul_f32 v24, {f32hex(1/512)}, v24      ; mean")
        for j in range(8): a(f"v_sub_f32 v{16+j}, v{16+j}, v24")
        a("v_mul_f32 v26, v16, v16")
        for j in range(1, 8): a(f"v_fmac_f32 v26, v{16+j}, v{16+j}")
        allreduce_add(a, 26, 25)
        a(f"""v_mov_b32 v27, {f32hex(1e-5)}
v_fmac_f32 v27, {f32hex(1/512)}, v26
v_rsq_f32 v25, v27
s_nop 0
v_mov_b32 v28, v24
v_mov_b32 v29, v25
s_lshl_b32 s40, s39, 3
v_mov_b32 v30, 0
s_mov_b64 s[42:43], exec
s_mov_b64 exec, 1
buffer_store_dwordx2 v[28:29], v30, {srd(SWS)}, s40 offen offset:{WS_STATS}
s_mov_b64 exec, s[42:43]""")
    a("s_waitcnt vmcnt(0)\nL_k0_end:\ns_endpgm")
```

```python
from parts import *

STAGE = 45056
LDS_CS = 3*STAGE
V_VX, V_VX2, V_VWQ, V_VW1 = 8, 9, 10, 11
V_LXA0, V_LXA1, V_LXB0, V_LXB1, V_LWA, V_LWB = 12, 13, 14, 15, 16, 17
V_XA0, V_XA1, V_XB0, V_XB1, V_WA, V_WB = 18, 19, 20, 21, 22, 23
V_SET = 24
ACC = 128
def acc(blk, ab): return ACC + (blk*2+ab)*16 if blk < 3 else ACC + 96
def vr(b, n): return f"v[{b}:{b+n-1}]"
S_P, S_U = 40, 41
S_FB0 = 42
S_SX, S_SQ, S_S1 = 43, 44, 45
S_DX, S_DW = 46, 47
S_DST = 48
S_RST = 49
S_CNT = 50

def p1_setup(a):
    a(f"""s_lshr_b32 s{S_P}, s6, 1
s_and_b32 s{S_U}, s6, 1""")
    fb0_of(a, S_FB0)
    a(f"""v_lshrrev_b32 v2, 2, v1              ; L>>2
v_and_b32 v3, 3, v1                   ; L&3
v_lshrrev_b32 v4, 4, v1               ; (L>>4)&3
v_xor_b32 v4, v3, v4
v_lshlrev_b32 v4, 4, v4
v_lshl_add_u32 v{V_VX}, v2, 10, v4
v_add_u32 v{V_VX2}, 0x4000, v{V_VX}
v_lshlrev_b32 v3, 4, v3
v_mul_u32_u24 v5, 0xc00, v2
v_add_u32 v{V_VWQ}, v5, v3
v_mul_u32_u24 v5, 0xe00, v2
v_add_u32 v{V_VW1}, v5, v3
v_and_b32 v2, 31, v1                  ; t
v_lshrrev_b32 v3, 5, v1               ; hh
v_bfe_u32 v4, v2, 2, 2                ; (t>>2)&3
v_xor_b32 v4, v3, v4
v_lshlrev_b32 v4, 4, v4
v_lshl_add_u32 v4, v2, 6, v4          ; A0
s_lshl_b32 s3, s{S_P}, 1
s_add_u32 s36, s3, s{S_U}             ; ia = 2p+u
s_xor_b32 s37, s36, 1                 ; ib
s_lshl_b32 s36, s36, 11
s_lshl_b32 s37, s37, 11
v_add_u32 v{V_LXA0}, s36, v4
v_add_u32 v{V_LXB0}, s37, v4
v_xor_b32 v{V_LXA1}, 32, v{V_LXA0}
v_xor_b32 v{V_LXB1}, 32, v{V_LXB0}
v_bfe_u32 v4, v1, 2, 2                ; i>>2
v_lshl_add_u32 v4, v3, 3, v4
v_lshlrev_b32 v4, 6, v4
v_bfe_u32 v5, v1, 4, 1
v_lshl_add_u32 v4, v5, 5, v4
v_and_b32 v5, 3, v1
v_lshl_add_u32 v4, v5, 3, v4
s_mul_i32 s36, s{S_U}, 3072
s_add_u32 s36, s36, 16384
v_add_u32 v{V_LWA}, s36, v4
v_add_u32 v{V_LWB}, {16384+6144}, v4
s_lshl_b32 s36, s4, 7
s_lshl_b32 s37, s6, 5
s_add_u32 s36, s36, s37
s_lshl_b32 s{S_SX}, s36, 10           ; (128r+32w)*1024
s_mul_i32 s36, s6, {16*3072}
s_lshl_b32 s37, s5, 6
s_add_u32 s{S_SQ}, s36, s37
s_mul_i32 s36, s6, {16*3584}
s_lshl_b32 s37, s{S_FB0}, 6
s_add_u32 s{S_S1}, s36, s37
s_lshl_b32 s{S_DX}, s6, 11            ; 2w*1024
s_mul_i32 s{S_DW}, s6, 7168
s_add_u32 s{S_DW}, s{S_DW}, 16384
s_mov_b32 s{S_DST}, 0
s_mov_b32 s{S_RST}, 0""")

def dma_list():
    g = []
    g.append(f"s_add_u32 m0, s{S_DST}, s{S_DX}\nbuffer_load_dwordx4 v{V_VX}, {srd(SX)}, s{S_SX} offen lds")
    g.append(f"s_addk_i32 m0, 1024\nbuffer_load_dwordx4 v{V_VX2}, {srd(SX)}, s{S_SX} offen lds")
    g.append(f"s_addk_i32 m0, {8192-1024-64}\nbuffer_load_dwordx4 v{V_VX}, {srd(SX)}, s{S_SX} offen offset:64 lds")
    g.append(f"s_addk_i32 m0, 1024\nbuffer_load_dwordx4 v{V_VX2}, {srd(SX)}, s{S_SX} offen offset:64 lds")
    g.append(f"s_add_u32 m0, s{S_DST}, s{S_DW}\nbuffer_load_dwordx4 v{V_VWQ}, {srd(SWQ)}, s{S_SQ} offen lds")
    g.append(f"s_add_u32 s{S_SX}, s{S_SX}, 128\nbuffer_load_dwordx4 v{V_VWQ}, {srd(SWQ)}, s{S_SQ} offen offset:1024 lds")
    g.append(f"buffer_load_dwordx4 v{V_VWQ}, {srd(SWQ)}, s{S_SQ} offen offset:2048 lds")
    g.append(f"s_addk_i32 m0, 3072\nbuffer_load_dwordx4 v{V_VW1}, {srd(SW1)}, s{S_S1} offen lds")
    for i in range(1, 4):
        g.append(f"s_addk_i32 m0, 960\nbuffer_load_dwordx4 v{V_VW1}, {srd(SW1)}, s{S_S1} offen offset:{64*i} lds")
    g.append(f"""s_add_u32 s{S_SQ}, s{S_SQ}, {64*3072}
s_add_u32 s{S_S1}, s{S_S1}, {64*3584}
s_add_u32 s{S_DST}, s{S_DST}, {STAGE}
s_cmp_ge_u32 s{S_DST}, {3*STAGE}
s_cselect_b32 s{S_DST}, 0, s{S_DST}""")
    return g

def fix_m0_hazard(g):
    out = []
    for s in g:
        ls = s.split("\n")
        r = []
        for i, l in enumerate(ls):
            r.append(l)
            if " m0," in l and i+1 < len(ls) and "lds" in ls[i+1]: r.append("s_nop 0")
        out.append("\n".join(r))
    return out

def addr_update():
    return [f"s_add_u32 s{S_RST}, s{S_RST}, {STAGE}\ns_cmp_ge_u32 s{S_RST}, {3*STAGE}\ns_cselect_b32 s{S_RST}, 0, s{S_RST}",
            f"v_add_u32 v{V_XA0}, s{S_RST}, v{V_LXA0}\nv_add_u32 v{V_XA1}, s{S_RST}, v{V_LXA1}",
            f"v_add_u32 v{V_XB0}, s{S_RST}, v{V_LXB0}\nv_add_u32 v{V_XB1}, s{S_RST}, v{V_LXB1}",
            f"v_add_u32 v{V_WA}, s{S_RST}, v{V_LWA}\nv_add_u32 v{V_WB}, s{S_RST}, v{V_LWB}"]

def reads(ks, st):
    b = V_SET + 24*st
    xa = V_XA0 + (ks & 1); xb = V_XB0 + (ks & 1)
    xo = (ks >> 1)*8192
    r = [f"ds_read_b128 {vr(b,4)}, v{xa} offset:{xo}"]
    def w(blk, q):
        if blk < 3: return f"ds_read_b64_tr_b16 {vr(b+8+4*blk+2*q,2)}, v{V_WA} offset:{(ks*7+blk)*1024+256*q}"
        return f"ds_read_b64_tr_b16 {vr(b+8+12+2*q,2)}, v{V_WB} offset:{ks*7*1024+256*q}"
    r += [w(0,0), w(0,1), f"ds_read_b128 {vr(b+4,4)}, v{xb} offset:{xo}", w(1,0), w(1,1), w(2,0), w(2,1), w(3,0), w(3,1)]
    return r

def mfmas(st, first=False):
    b = V_SET + 24*st
    xa, xb = vr(b,4), vr(b+4,4)
    W = lambda k: vr(b+8+4*k,4)
    out = []
    for blk in range(3):
        for ab, x in ((0, xa), (1, xb)):
            d = vr(acc(blk,ab),16)
            out.append(f"v_mfma_f32_32x32x16_bf16 {d}, {W(blk)}, {x}, {'0' if first else d}")
    d = vr(acc(3,0),16)
    out.append(f"v_mfma_f32_32x32x16_bf16 {d}, {W(3)}, {xa}, {'0' if first else d}")
    return out

def kstep(a, st, rd, extras, first=False, pre_reads=None):
    m = mfmas(st, first)
    a("s_waitcnt lgkmcnt(0)")
    rd = list(rd); extras = list(extras)
    for i, mm in enumerate(m):
        a(mm)
        if i == 0 and pre_reads: a(pre_reads)
        n = 0
        while rd and n < 2:
            a(rd.pop(0)); n += 1
        if n < 2 or (i >= 5):
            if extras: a(extras.pop(0))
    for e in rd: a(e)
    for e in extras: a(e)

def body(a, issue, wait, last=False, first=False):
    d = fix_m0_hazard(dma_list()) if issue else []
    e0, e1, e2 = d[:5], d[5:9], d[9:]
    kstep(a, 0, reads(1, 1), e0, first=first)
    kstep(a, 1, reads(2, 0), e1)
    kstep(a, 0, reads(3, 1), e2 + ([] if last else addr_update()))
    if last:
        kstep(a, 1, [], [])
    else:
        kstep(a, 1, reads(0, 0), [], pre_reads=f"s_waitcnt vmcnt({wait})\ns_barrier")

def p1_main(a):
    d = fix_m0_hazard(dma_list())
    for j in range(3):
        for g in d: a(g)
    a(f"""v_mov_b32 v{V_XA0}, v{V_LXA0}
v_mov_b32 v{V_XA1}, v{V_LXA1}
v_mov_b32 v{V_XB0}, v{V_LXB0}
v_mov_b32 v{V_XB1}, v{V_LXB1}
v_mov_b32 v{V_WA}, v{V_LWA}
v_mov_b32 v{V_WB}, v{V_LWB}""")
    return d

def p1_loop(a):
    a("s_waitcnt vmcnt(22)\ns_barrier")
    for r in reads(0, 0): a(r)
    body(a, issue=False, wait=11, first=True)
    a(f"s_mov_b32 s{S_CNT}, 5")
    a.label("L_p1_loop")
    body(a, issue=True, wait=11)
    a(f"s_sub_u32 s{S_CNT}, s{S_CNT}, 1\ns_cmp_lg_u32 s{S_CNT}, 0\ns_cbranch_scc1 L_p1_loop ; @trip=5")
    body(a, issue=False, wait=0)
    body(a, issue=False, wait=0, last=True)

V_ST = 88
def p1_pre_loads(a):
    a(f"""s_lshl_b32 s36, s5, 10             ; c*1024
s_add_u32 s36, s36, {WS_CS}
v_lshlrev_b32 v2, 2, v0""")
    for rr in range(16):
        a(f"buffer_load_dword v{72+rr}, v2, {srd(SWS)}, s36 offen")
        if rr < 15: a(f"s_add_u32 s36, s36, 16384")
    a(f"""s_lshl_b32 s36, s4, 2
s_lshl_b32 s37, s{S_P}, 1
s_add_u32 s36, s36, s37              ; 4r+2p
s_add_u32 s51, s36, s{S_U}           ; tba
s_xor_b32 s52, s51, 1                ; tbb
v_and_b32 v2, 31, v1
v_lshlrev_b32 v2, 3, v2
s_lshl_b32 s36, s51, 8
s_lshl_b32 s37, s52, 8
buffer_load_dwordx2 v[{V_ST}:{V_ST+1}], v2, {srd(SWS)}, s36 offen offset:{WS_STATS}
buffer_load_dwordx2 v[{V_ST+2}:{V_ST+3}], v2, {srd(SWS)}, s37 offen offset:{WS_STATS}""")

def p1_cs_reduce(a):
    a("s_waitcnt vmcnt(33)")
    for rr in range(1, 16): a(f"v_add_f32 v72, v72, v{72+rr}")
    a(f"v_lshlrev_b32 v2, 2, v0\nv_add_u32 v2, {LDS_CS}, v2\nds_write_b32 v2, v72\ns_waitcnt lgkmcnt(0)")

def split_frag_m(a, dst, m):
    a(f"""v_cvt_pk_bf16_f32 v{dst}, -v{m}, -v{m}
v_lshlrev_b32 v2, 16, v{dst}
v_sub_f32_e64 v2, -v{m}, v2
v_cvt_pk_bf16_f32 v{dst+1}, v2, 0
v_cndmask_b32 v{dst}, 0, v{dst}, vcc
v_cndmask_b32 v{dst+1}, 0, v{dst+1}, vcc
v_mov_b32 v{dst+2}, 0
v_mov_b32 v{dst+3}, 0""")

def split_frag_cs(a, dst, cs):
    a(f"""v_cvt_pk_bf16_f32 v{dst+1}, v{cs}, 0
v_lshlrev_b32 v2, 16, v{dst+1}
v_sub_f32 v2, v{cs}, v2
v_cvt_pk_bf16_f32 v{dst}, v{cs}, v2
v_mov_b32 v{dst+2}, 0
v_mov_b32 v{dst+3}, 0""")

def p1_correction(a):
    a(f"""v_and_b32 v3, 31, v1
v_lshlrev_b32 v3, 2, v3
s_mul_i32 s36, s{S_U}, 384
s_add_u32 s36, s36, {LDS_CS}
v_add_u32 v4, s36, v3
v_add_u32 v5, {LDS_CS+768}, v3
ds_read_b32 v48, v4
ds_read_b32 v49, v4 offset:128
ds_read_b32 v50, v4 offset:256
ds_read_b32 v51, v5
v_cmp_gt_u32 vcc, 32, v1""")
    a("s_nop 1")
    split_frag_m(a, 24, V_ST); split_frag_m(a, 28, V_ST+2)
    a("s_waitcnt lgkmcnt(0)")
    for i in range(4): split_frag_cs(a, 32+4*i, 48+i)
    a("s_nop 1")
    for blk in range(3):
        for ab in range(2):
            d = vr(acc(blk,ab),16)
            a(f"v_mfma_f32_32x32x16_bf16 {d}, {vr(32+4*blk,4)}, {vr(24+4*ab,4)}, {d}")
    d = vr(acc(3,0),16)
    a(f"v_mfma_f32_32x32x16_bf16 {d}, {vr(44,4)}, {vr(24,4)}, {d}")

def cvt_tile(a, accb, dst, scale=None, relu=False):
    if scale is not None:
        for r in range(16): a(f"v_mul_f32 v{accb+r}, v{accb+r}, v{scale}")
    for r in range(8): a(f"v_cvt_pk_bf16_f32 v{dst+r}, v{accb+2*r}, v{accb+2*r+1}")
    if relu:
        for r in range(8): a(f"v_pk_max_i16 v{dst+r}, v{dst+r}, 0")

def p1_epilogue(a, q_to_ws=True):
    p1_correction(a)
    a(f"""v_lshlrev_b32 v6, 4, v1              ; lane*16
v_and_b32 v2, 31, v1
v_lshrrev_b32 v3, 5, v1
v_bfe_u32 v4, v2, 3, 1
v_xor_b32 v3, v3, v4
v_lshl_add_u32 v3, v2, 1, v3
v_lshlrev_b32 v7, 4, v3              ; slot*16
v_mul_f32 v92, {f32hex(0.25*LOG2E)}, v{V_ST+1}     ; q scale a
v_mul_f32 v93, {f32hex(0.25*LOG2E)}, v{V_ST+3}     ; q scale b
s_nop 7
s_cmp_eq_u32 s{S_U}, 0
s_cbranch_scc0 L_p1_epi_u1 ; @u1""")
    a(f"""s_lshl_b32 s36, s5, 17             ; 2c*65536
s_lshl_b32 s37, s51, 10
s_add_u32 s53, s36, s37
s_lshl_b32 s37, s52, 10
s_add_u32 s54, s36, s37""")
    tmp = 96
    for blk, base, voff in ((1, WS_K, 7), (2, WS_V, 7), (0, WS_Q, 6)):
        for ab in range(2):
            sc = (92+ab) if blk == 0 else (V_ST+1+2*ab)
            cvt_tile(a, acc(blk,ab), tmp, scale=sc)
            a(f"""s_add_u32 s36, s{53+ab}, {base}
s_add_u32 s37, s36, 65536
buffer_store_dwordx4 {vr(tmp,4)}, v{voff}, {srd(SWS)}, s36 offen sc1
buffer_store_dwordx4 {vr(tmp+4,4)}, v{voff}, {srd(SWS)}, s37 offen sc1""")
            tmp = 96 + (tmp - 96 + 8) % 24
    a("s_branch L_p1_epi_f3")
    a.label("L_p1_epi_u1")
    a(f"""s_mul_i32 s53, s51, {112*1024}
s_mul_i32 s54, s52, {112*1024}
s_lshl_b32 s36, s{S_FB0}, 11
s_add_u32 s36, s36, {WS_H}
s_add_u32 s53, s53, s36
s_add_u32 s54, s54, s36""")
    tmp = 96
    for blk in range(3):
        if blk == 0:
            a(f"s_bitcmp1_b32 s5, 0\ns_cbranch_scc1 L_p1_skipF0 ; @odd")
        for ab in range(2):
            cvt_tile(a, acc(blk,ab), tmp, relu=True)
            a(f"""s_add_u32 s36, s{53+ab}, {blk*2048}
buffer_store_dwordx4 {vr(tmp,4)}, v6, {srd(SWS)}, s36 offen sc1
buffer_store_dwordx4 {vr(tmp+4,4)}, v6, {srd(SWS)}, s36 offen offset:1024 sc1""")
            tmp = 96 + (tmp - 96 + 8) % 24
        if blk == 0: a.label("L_p1_skipF0")
    a.label("L_p1_epi_f3")
    a(f"""s_mul_i32 s53, s51, {112*1024}
s_lshl_b32 s36, s{S_FB0}, 11
s_add_u32 s36, s36, {WS_H + 3*2048}
s_add_u32 s53, s53, s36""")
    cvt_tile(a, acc(3,0), 120, relu=True)
    a(f"""buffer_store_dwordx4 {vr(120,4)}, v6, {srd(SWS)}, s53 offen sc1
buffer_store_dwordx4 {vr(124,4)}, v6, {srd(SWS)}, s53 offen offset:1024 sc1""")

def gen_k1(a):
    prologue(a, "L_k1_end")
    p1_setup(a)
    p1_pre_loads(a)
    p1_main(a)
    p1_cs_reduce(a)
    p1_loop(a)
    p1_epilogue(a)
    a("s_waitcnt vmcnt(0)\nL_k1_end:\ns_endpgm")
```

```python
from parts import *
def vr(b, n): return f"v[{b}:{b+n-1}]"

class L:
    K = 0
    V = 24576
    HS = 12288
    ONES = 49152
    END = 49152 + 12288 + 1024
Q0, Q1 = 8, 12
KF0, KF1 = 16, 20
VF0, VF1 = 24, 32
S0, S1 = 40, 56
P0, P1 = 72, 80
O0, O1 = 88, 104
NM0, NM1 = 120, 136
CFAR, CDIAG = 152, 168
MFAR = 184
V_KA, V_VA0, V_VA1, V_VINC = 192, 193, 194, 195
V_KA_L, V_VA0_L, V_VA1_L = 196, 197, 198
M0R, M1R = 199, 200
S_QT, S_NMID, S_FAR, S_CNT2 = 55, 56, 57, 58
BIG = "0xff7fffff"

def att_consts(a):
    a(f"""v_and_b32 v2, 31, v1                 ; i = query
v_lshrrev_b32 v3, 5, v1               ; hh
v_lshlrev_b32 v4, 2, v3               ; 4hh
v_mov_b32 v5, {BIG}
v_mov_b32 v6, 0""")
    for r in range(16):
        j0 = 8*(r >> 2) + (r & 3)
        a(f"""v_add_u32 v7, {j0}, v4
v_cmp_gt_u32 vcc, v7, v2             ; j > i
s_nop 1
v_cndmask_b32 v{CFAR+r}, v5, v6, vcc
v_cndmask_b32 v{CDIAG+r}, v6, v5, vcc""")
    for p in range(8):
        a(f"""v_cmp_eq_u32 vcc, 0, v{CFAR+2*p}
v_mov_b32 v7, 0xffff
s_nop 0
v_cndmask_b32 v{MFAR+p}, 0, v7, vcc
v_cmp_eq_u32 vcc, 0, v{CFAR+2*p+1}
v_mov_b32 v7, 0xffff0000
s_nop 0
v_cndmask_b32 v7, 0, v7, vcc
v_or_b32 v{MFAR+p}, v{MFAR+p}, v7""")
    a(f"""v_mov_b32 v4, 0x3f803f80
v_mov_b32 v5, 0x3f803f80
v_mov_b32 v6, 0x3f803f80
v_mov_b32 v7, 0x3f803f80
v_lshlrev_b32 v2, 4, v1
v_add_u32 v2, {L.ONES}, v2
ds_write_b128 v2, v[4:7]
ds_write_b128 v2, v[4:7] offset:{L.HS}""")
    a(f"""v_and_b32 v2, 31, v1
v_lshrrev_b32 v3, 5, v1
v_bfe_u32 v4, v2, 3, 1
v_xor_b32 v3, v3, v4
v_lshl_add_u32 v3, v2, 1, v3
v_lshlrev_b32 v3, 4, v3
s_add_u32 s36, s6, 8
s_lshl_b32 s36, s36, 10
s_add_u32 s37, s36, {L.K}
v_add_u32 v{V_KA_L}, s37, v3
v_bfe_u32 v2, v1, 2, 2                ; rr
v_lshrrev_b32 v3, 5, v1               ; hh'
v_lshl_add_u32 v2, v3, 2, v2          ; 4hh'+rr
v_lshlrev_b32 v2, 5, v2
v_and_b32 v4, 1, v1
v_lshl_add_u32 v5, v4, 4, v2          ; + (cq&1)*16
v_bfe_u32 v6, v1, 1, 1
v_lshl_add_u32 v5, v6, 3, v5          ; + (cq>>1)*8      -> A_q0
v_xor_b32 v6, 16, v5
v_add_u32 v6, 256, v6                 ; A_q1
s_add_u32 s37, s36, {L.V}
v_add_u32 v5, s37, v5
v_add_u32 v6, s37, v6
v_xor_b32 v3, 1, v3
v_lshlrev_b32 v3, 7, v3
v_add_u32 v3, {L.ONES}, v3
v_bfe_u32 v4, v1, 4, 1
v_cmp_eq_u32 vcc, 1, v4
v_mov_b32 v7, 0xfffffc00              ; -1024
s_nop 0
v_cndmask_b32 v{V_VA0_L}, v5, v3, vcc
v_cndmask_b32 v{V_VA1_L}, v6, v3, vcc
v_cndmask_b32 v{V_VINC}, v7, 0, vcc""")

def att_counts(a):
    a(f"""s_lshl_b32 s{S_QT}, s4, 2
s_add_u32 s{S_QT}, s{S_QT}, s6          ; qt = 4r+w
s_cmp_ge_u32 s{S_QT}, 8
s_cselect_b32 s{S_FAR}, 1, 0
s_cselect_b32 s{S_NMID}, 7, s{S_QT}""")

def kread(h): return f"ds_read_b128 {vr(KF0+4*h,4)}, v{V_KA} offset:{h*L.HS}"
def vreads(h):
    b = VF0 + 8*h
    return [f"ds_read_b64_tr_b16 {vr(b+4*ks+2*q,2)}, v{V_VA0+q} offset:{h*L.HS+512*ks}" for ks in range(2) for q in range(2)]
def smfma(h, c): return f"v_mfma_f32_32x32x16_bf16 {vr(S0+16*h,16)}, {vr(KF0+4*h,4)}, {vr(Q0+4*h,4)}, {c}"
def pvmfma(h, ks): return f"v_mfma_f32_32x32x16_bf16 {vr(O0+16*h,16)}, {vr(VF0+8*h+4*ks,4)}, {vr(P0+8*h+4*ks,4)}, {vr(O0+16*h,16)}"

def pass1_step(a, nxt):
    for h in range(2):
        m = M0R + h; s = S0 + 16*h
        for i in range(8): a(f"v_max3_f32 v{m}, v{m}, v{s+2*i}, v{s+2*i+1}")
        if nxt is not None:
            if h == 0: a("s_waitcnt lgkmcnt(0)")
            a(smfma(h, nxt))
    if nxt is not None:
        a(f"v_add_u32 v{V_KA}, 0xfffffc00, v{V_KA}")
        a(kread(0)); a(kread(1))

def att_pass1(a):
    a(f"v_mov_b32 v{V_KA}, v{V_KA_L}\nv_mov_b32 v{M0R}, {BIG}\nv_mov_b32 v{M1R}, {BIG}")
    a(kread(0)); a(kread(1))
    a("s_waitcnt lgkmcnt(0)")
    a(smfma(0, vr(CDIAG,16))); a(smfma(1, vr(CDIAG,16)))
    a(f"v_add_u32 v{V_KA}, 0xfffffc00, v{V_KA}")
    a(kread(0)); a(kread(1))
    a(f"s_mov_b32 s{S_CNT2}, s{S_NMID}\ns_cmp_eq_u32 s{S_CNT2}, 0\ns_nop 7\ns_cbranch_scc1 L_a1_mid_done ; @nomid")
    a.label("L_a1_mid")
    pass1_step(a, "0")
    a(f"s_sub_u32 s{S_CNT2}, s{S_CNT2}, 1\ns_cmp_lg_u32 s{S_CNT2}, 0\ns_cbranch_scc1 L_a1_mid ; @trip=7")
    a.label("L_a1_mid_done")
    a(f"s_cmp_eq_u32 s{S_FAR}, 0\ns_cbranch_scc1 L_a1_nofar ; @nofar")
    pass1_step(a, vr(CFAR,16))
    a("s_nop 3")
    a.label("L_a1_nofar")
    pass1_step(a, None)
    for h in range(2):
        m = M0R + h
        a(f"""v_mov_b32 v2, v{m}
s_nop 1
v_permlane32_swap_b32 v2, v{m}
s_nop 1
v_max_f32 v{m}, v{m}, v2
v_sub_f32 v{m}, 0, v{m}""")
        for r in range(16): a(f"v_mov_b32 v{NM0+16*h+r}, v{m}")

def phase(a, h, mask, extra):
    o = 1 - h
    s = S0 + 16*h; p = P0 + 8*h
    E = [f"v_exp_f32 v{s+r}, v{s+r}" for r in range(16)]
    def C(k):
        t = f"v_cvt_pk_bf16_f32 v{p+k}, v{s+2*k}, v{s+2*k+1}"
        return t
    def MK(k):
        if mask == "far": return f"v_and_b32 v{p+k}, v{p+k}, v{MFAR+k}"
        if mask == "diag": return f"v_bfi_b32 v{p+k}, v{MFAR+k}, 0, v{p+k}"
        return None
    M = [smfma(o, vr(NM0+16*o,16)), pvmfma(o, 0), pvmfma(o, 1)]
    D = vreads(h) + [kread(h)]
    X = list(extra)
    seq = ["s_waitcnt lgkmcnt(0)", M[0], E[0], D[0], E[1], D[1], E[2], C(0), E[3], D[2], E[4], C(1), M[1], E[5], D[3], E[6], C(2), E[7], D[4],
           E[8], C(3), M[2], E[9], "X", E[10], C(4), E[11], "X", E[12], C(5), E[13], "X", E[14], C(6), E[15], "XN", C(7)]
    for s_ in seq:
        if s_ == "X":
            if X: a(X.pop(0))
        elif s_ == "XN":
            a(X.pop(0) if X else "s_nop 0")
        else: a(s_)
    for x in X: a(x)
    if mask:
        for k in range(8): a(MK(k))

def pass2_step(a, mask):
    phase(a, 0, mask, [])
    phase(a, 1, mask, [f"v_add_u32 v{V_KA}, 0xfffffc00, v{V_KA}", f"v_add_u32 v{V_VA0}, v{V_VINC}, v{V_VA0}", f"v_add_u32 v{V_VA1}, v{V_VINC}, v{V_VA1}"])

def att_pass2(a):
    for r in range(16): a(f"v_mov_b32 v{O0+r}, 0\nv_mov_b32 v{O1+r}, 0")
    for r in range(8): a(f"v_mov_b32 v{P1+r}, 0\nv_mov_b32 v{VF1+r}, 0")
    a(f"v_mov_b32 v{V_KA}, v{V_KA_L}\nv_mov_b32 v{V_VA0}, v{V_VA0_L}\nv_mov_b32 v{V_VA1}, v{V_VA1_L}")
    a(kread(0)); a(kread(1))
    a("s_waitcnt lgkmcnt(0)")
    a(smfma(0, vr(NM0,16)))
    a(f"v_add_u32 v{V_KA}, 0xfffffc00, v{V_KA}")
    a("s_nop 7\ns_nop 1")
    pass2_step(a, "diag")
    a(f"s_mov_b32 s{S_CNT2}, s{S_NMID}\ns_cmp_eq_u32 s{S_CNT2}, 0\ns_cbranch_scc1 L_a2_mid_done ; @nomid")
    a.label("L_a2_mid")
    pass2_step(a, None)
    a(f"s_sub_u32 s{S_CNT2}, s{S_CNT2}, 1\ns_cmp_lg_u32 s{S_CNT2}, 0\ns_cbranch_scc1 L_a2_mid ; @trip=7")
    a.label("L_a2_mid_done")
    a(f"s_cmp_eq_u32 s{S_FAR}, 0\ns_cbranch_scc1 L_a2_nofar ; @nofar")
    pass2_step(a, "far")
    a.label("L_a2_nofar")
    a("s_waitcnt lgkmcnt(0)\ns_nop 1")
    a(pvmfma(1, 0)); a(pvmfma(1, 1))

def att_finish(a, dst0):
    a("s_nop 7\ns_nop 3")
    for h in range(2):
        o = O0 + 16*h
        a(f"v_rcp_f32 v2, v{o+8}\ns_nop 0")
        for r in range(8): a(f"v_mul_f32 v{o+r}, v{o+r}, v2")
        for k in range(4): a(f"v_cvt_pk_bf16_f32 v{dst0+4*h+k}, v{o+2*k}, v{o+2*k+1}")

def gen_k2(a):
    prologue(a, "L_k2_end")
    a(f"""s_and_b32 s36, s6, 1
s_lshl_b32 s37, s5, 1
s_add_u32 s37, s37, s36              ; head
s_lshl_b32 s37, s37, 16              ; *64*1024
s_lshl_b32 s38, s4, 12               ; 4r*1024
s_add_u32 s37, s37, s38
s_lshr_b32 s38, s6, 1
s_mul_i32 s39, s38, {WS_V-WS_K}
s_add_u32 s37, s37, s39
s_add_u32 s37, s37, {WS_K-8192}
s_mul_i32 s39, s38, {L.V-L.K}
s_mul_i32 s38, s36, {L.HS}
s_add_u32 s38, s38, s39
s_add_u32 s38, s38, {L.K}
v_lshlrev_b32 v2, 4, v1""")
    for g in range(3):
        a(f"s_mov_b32 m0, s38\ns_nop 0")
        for i in range(4): a(f"buffer_load_dwordx4 v2, {srd(SWS)}, s37 offen offset:{1024*i} sc1 lds")
        a("s_add_u32 s37, s37, 4096\ns_add_u32 s38, s38, 4096")
    a(f"""s_lshl_b32 s36, s5, 17
s_lshl_b32 s37, s4, 12
s_lshl_b32 s38, s6, 10
s_add_u32 s36, s36, s37
s_add_u32 s36, s36, s38
s_add_u32 s36, s36, {WS_Q}
s_add_u32 s37, s36, 65536
buffer_load_dwordx4 {vr(Q0,4)}, v2, {srd(SWS)}, s36 offen sc1
buffer_load_dwordx4 {vr(Q1,4)}, v2, {srd(SWS)}, s37 offen sc1""")
    att_consts(a); att_counts(a)
    a("s_waitcnt vmcnt(0) lgkmcnt(0)\ns_barrier")
    att_pass1(a); att_pass2(a); att_finish(a, 72)
    a(f"""s_lshl_b32 s36, s{S_QT}, 15
s_lshl_b32 s37, s5, 11
s_add_u32 s36, s36, s37
s_add_u32 s36, s36, {WS_A}
v_lshlrev_b32 v2, 4, v1
buffer_store_dwordx4 v[72:75], v2, {srd(SWS)}, s36 offen sc1
buffer_store_dwordx4 v[76:79], v2, {srd(SWS)}, s36 offen offset:1024 sc1""")
    a("s_waitcnt vmcnt(0)\nL_k2_end:\ns_endpgm")
```

```python
from parts import *
def vr(b, n): return f"v[{b}:{b+n-1}]"
def ar(b, n): return f"a[{b}:{b+n-1}]"

KS = 4
NST = 18
STG = KS*4096
V_WD, V_AL, V_TR0, V_TR1 = 8, 9, 10, 11
WF = 16
YA, SA = 32, 64
V_X, V_STAT = 96, 104
S_T, S_KK, S_TB, S_G = 40, 41, 42, 43
S_W2, S_WO, S_H, S_A, S_LD = 44, 45, 46, 47, 48

class Cfg:
    R = 7
    D = 6
    base = 0
    red = 0

def setup(a, cfg):
    a(f"""s_and_b32 s{S_T}, s6, 1
s_lshr_b32 s{S_KK}, s6, 1
s_lshr_b32 s36, s5, 3
s_lshl_b32 s36, s36, 1
s_lshl_b32 s37, s4, 2
s_add_u32 s36, s36, s37
s_add_u32 s{S_TB}, s36, s{S_T}          ; tb = 4r + 2(c>>3) + t
s_and_b32 s{S_G}, s5, 7
v_lshrrev_b32 v2, 2, v1
v_and_b32 v3, 3, v1
v_lshlrev_b32 v3, 4, v3
v_lshl_add_u32 v{V_WD}, v2, 10, v3
v_lshlrev_b32 v{V_AL}, 4, v1
v_bfe_u32 v2, v1, 2, 2
v_lshrrev_b32 v3, 5, v1
v_lshl_add_u32 v2, v3, 2, v2
v_lshlrev_b32 v2, 6, v2
v_bfe_u32 v3, v1, 4, 1
v_lshl_add_u32 v2, v3, 5, v2
v_and_b32 v3, 3, v1
v_lshl_add_u32 v2, v3, 3, v2
s_mul_i32 s36, s{S_KK}, {KS*2048}
s_add_u32 s36, s36, {cfg.base}
v_add_u32 v{V_TR0}, s36, v2
v_add_u32 v{V_TR1}, 0x10000, v{V_TR0}
s_lshl_b32 s36, s{S_G}, 7
s_lshl_b32 s37, s{S_T}, 6
s_add_u32 s36, s36, s37               ; 128*g + 64*nb(=t)
s_mul_i32 s37, s{S_KK}, {56*16*1024}
s_add_u32 s{S_W2}, s36, s37
s_mul_i32 s37, s{S_KK}, {16*16*1024}
s_add_u32 s{S_WO}, s36, s37
s_mul_i32 s36, s{S_TB}, {112*1024}
s_mul_i32 s37, s{S_KK}, {56*1024}
s_add_u32 s36, s36, s37
s_add_u32 s{S_H}, s36, {WS_H}
s_lshl_b32 s36, s{S_TB}, 15
s_lshl_b32 s37, s{S_KK}, 14
s_add_u32 s36, s36, s37
s_add_u32 s{S_A}, s36, {WS_A}
s_mul_i32 s36, s{S_KK}, {KS*2048}
s_lshl_b32 s37, s{S_T}, 10
s_add_u32 s36, s36, s37
s_add_u32 s{S_LD}, s36, {cfg.base}""")

def issue_stage(cfg, j):
    W = []; A = []
    slot = j % cfg.R
    for ks in range(KS):
        if j < 14:
            sr, so = srd(SW2), f"s{S_W2}"; step = 16*1024
        else:
            sr, so = srd(SWO), f"s{S_WO}"; step = 16*1024
        W.append(f"s_add_u32 m0, s{S_LD}, {slot*STG + ks*2048}\ns_nop 0\nbuffer_load_dwordx4 v{V_WD}, {sr}, {so} offen lds\ns_add_u32 {so}, {so}, {step}")
        ai = ((j % cfg.R)*KS + ks)*4
        if j < 14: so2 = f"s{S_H}"
        else: so2 = f"s{S_A}"
        A.append(f"buffer_load_dwordx4 {ar(ai,4)}, v{V_AL}, {srd(SWS)}, {so2} offen sc1\ns_add_u32 {so2}, {so2}, 1024")
    return W, A

def wreads(cfg, j, ks, st):
    slot = j % cfg.R
    off = slot*STG + ks*2048
    base = V_TR0
    if off + 1024 + 512 + 1024 > 65535: base = V_TR1; off -= 65536
    if off < 0:
        base = V_TR0; off += 65536
    b = WF + 8*st
    return [f"ds_read_b64_tr_b16 {vr(b+4*nb+2*q,2)}, v{base} offset:{off+nb*1024+q*512}" for nb in range(2) for q in range(2)]

def mf(cfg, j, ks, st, first):
    b = WF + 8*st
    ai = ((j % cfg.R)*KS + ks)*4
    accb = YA if j < 14 else SA
    return [f"v_mfma_f32_32x32x16_bf16 {vr(accb+16*nb,16)}, {vr(b+4*nb,4)}, {ar(ai,4)}, {'0' if first else vr(accb+16*nb,16)}" for nb in range(2)]

def main(a, cfg):
    for j in range(cfg.D):
        W, A = issue_stage(cfg, j)
        for g in W + A: a(g)
    issued = cfg.D
    a(f"s_waitcnt vmcnt({(issued-1)*8})\ns_barrier")
    for r in wreads(cfg, 0, 0, 0): a(r)
    st = 0
    for j in range(NST):
        pend = []
        if issued < NST and j >= 0:
            W, A = issue_stage(cfg, issued); pend = W + A; issued += 1
        for ks in range(KS):
            a("s_waitcnt lgkmcnt(0)")
            first = (ks == 0 and j in (0, 14))
            m = mf(cfg, j, ks, st, first)
            last = (j == NST-1 and ks == KS-1)
            a(m[0])
            if not last:
                if ks == KS-1:
                    out = (issued - (j+2))*8
                    a(f"s_waitcnt vmcnt({max(out,0)})\ns_barrier")
                    nx = wreads(cfg, j+1, 0, 1-st)
                else:
                    nx = wreads(cfg, j, ks+1, 1-st)
                a(nx[0]); a(nx[1])
            a(m[1])
            if not last: a(nx[2]); a(nx[3])
            if ks < KS-1:
                n = (len(pend) + (KS-2-ks)) // (KS-1-ks)
                for _ in range(n): a(pend.pop(0))
            st = 1-st
        assert not pend

def final_loads(a):
    a(f"""v_and_b32 v2, 31, v1
s_lshl_b32 s36, s{S_TB}, 5
v_add_u32 v2, s36, v2                   ; token
v_lshlrev_b32 v3, 3, v2
buffer_load_dwordx2 v[{V_STAT}:{V_STAT+1}], v3, {srd(SWS)}, 0 offen offset:{WS_STATS}
v_lshlrev_b32 v2, 10, v2
v_lshrrev_b32 v3, 5, v1
v_lshl_add_u32 v12, v3, 3, v2
s_lshl_b32 s36, s{S_G}, 7
s_lshl_b32 s37, s{S_KK}, 6
s_add_u32 s49, s36, s37                 ; 128g + 64nb""")
    for q in range(4):
        a(f"buffer_load_dwordx2 v[{V_X+2*q}:{V_X+2*q+1}], v12, {srd(SX)}, s49 offen offset:{16*q}")

def reduce_and_finish(a, cfg):
    a("s_nop 7\ns_nop 3\ns_barrier")
    a(f"""s_lshl_b32 s36, s{S_T}, 1
s_xor_b32 s37, s{S_KK}, 1
s_add_u32 s37, s37, s36
s_lshl_b32 s37, s37, 13
s_add_u32 s36, s36, s{S_KK}
s_lshl_b32 s36, s36, 13
v_lshlrev_b32 v2, 4, v1
v_add_u32 v3, s37, v2
v_add_u32 v4, s36, v2
v_add_u32 v3, {cfg.red}, v3
v_add_u32 v4, {cfg.red}, v4
s_cmp_eq_u32 s{S_KK}, 0
s_cbranch_scc0 L_k3_w1 ; @kk1""")
    def wr(nb):
        for i in range(4): a(f"ds_write_b128 v3, {vr(YA+16*nb+4*i,4)} offset:{1024*i}")
        for i in range(4): a(f"ds_write_b128 v3, {vr(SA+16*nb+4*i,4)} offset:{4096+1024*i}")
    wr(1)
    a("s_branch L_k3_w2")
    a.label("L_k3_w1")
    wr(0)
    a("s_nop 1")
    for i in range(16): a(f"v_mov_b32 v{YA+i}, v{YA+16+i}\nv_mov_b32 v{SA+i}, v{SA+16+i}")
    a.label("L_k3_w2")
    a("s_waitcnt lgkmcnt(0)\ns_barrier")
    T = 112
    for i in range(4): a(f"ds_read_b128 {vr(T+4*i,4)}, v4 offset:{1024*i}")
    for i in range(4): a(f"ds_read_b128 {vr(T+16+4*i,4)}, v4 offset:{4096+1024*i}")
    a("s_waitcnt lgkmcnt(0)")
    for i in range(16): a(f"v_add_f32 v{YA+i}, v{YA+i}, v{T+i}\nv_add_f32 v{SA+i}, v{SA+i}, v{T+16+i}")
    a("s_waitcnt vmcnt(0)")
    a(f"v_mul_f32 v13, {f32hex(-LOG2E)}, v{V_STAT+1}")
    for r in range(16):
        a(f"v_mul_f32 v{T+r}, v{YA+r}, v13")
    for r in range(16):
        a(f"v_exp_f32 v{T+r}, v{T+r}\nv_mul_f32 v{SA+r}, v{SA+r}, v{YA+r}")
    for r in range(16):
        a(f"v_add_f32 v{T+r}, 1.0, v{T+r}")
    for r in range(16):
        a(f"v_rcp_f32 v{T+r}, v{T+r}\nv_mul_f32 v{SA+r}, v{SA+r}, v{V_STAT+1}")
    for q in range(4):
        for hlf in range(2):
            xr = V_X + 2*q + hlf
            r = 4*q + 2*hlf
            a(f"""v_lshlrev_b32 v14, 16, v{xr}
v_and_b32 v15, 0xffff0000, v{xr}
v_fma_f32 v14, v{SA+r}, v{T+r}, v14
v_fma_f32 v15, v{SA+r+1}, v{T+r+1}, v15
v_cvt_pk_bf16_f32 v{xr}, v14, v15""")
    for q in range(4):
        a(f"buffer_store_dwordx2 v[{V_X+2*q}:{V_X+2*q+1}], v12, {srd(SOUT)}, s49 offen offset:{16*q}")

def gen_k3(a):
    cfg = Cfg()
    prologue(a, "L_k3_end")
    setup(a, cfg)
    final_loads(a)
    main(a, cfg)
    reduce_and_finish(a, cfg)
    a("s_waitcnt vmcnt(0)\nL_k3_end:\ns_endpgm")
```

```python
from asmlib import Asm
from common import *

WS_STATS = 0x0
WS_CS    = 0x10000
WS_K     = 0x100000
WS_V     = 0x300000
WS_Q     = 0x500000
WS_A     = 0x700000
WS_H     = 0x900000
WS_FLAG  = 0x1100000
WS_SIZE  = 0x1200000

SX, SWQ, SWO, SW1, SW2, SOUT, SWS = 8, 12, 16, 20, 24, 28, 32
def srd(n): return f"s[{n}:{n+3}]"
LOG2E = 1.4426950408889634

def f32hex(x):
    import struct
    return "0x%08x" % struct.unpack("<I", struct.pack("<f", x))[0]

def prologue(a, end_label):
    a(f"""s_cmp_ge_u32 s2, 256
s_cbranch_scc1 {end_label}
s_load_dwordx16 s[64:79], s[0:1], 0
s_load_dwordx2 s[80:81], s[0:1], 64
v_lshrrev_b32 v2, 6, v0
v_and_b32 v1, 63, v0
s_and_b32 s3, s2, 7
s_lshr_b32 s7, s2, 3
v_readfirstlane_b32 s6, v2
s_and_b32 s4, s3, 1
s_lshl_b32 s4, s4, 3
s_and_b32 s36, s7, 7
s_add_u32 s4, s4, s36
s_lshr_b32 s5, s3, 1
s_lshl_b32 s5, s5, 2
s_lshr_b32 s36, s7, 3
s_add_u32 s5, s5, s36
s_waitcnt lgkmcnt(0)""")
    for (dst, src, size) in ((SX, 64, 0x200000), (SWQ, 66, 0x180000), (SWO, 68, 0x80000), (SW1, 72, 0x1C0000), (SW2, 74, 0x1C0000), (SOUT, 76, 0x200000), (SWS, 80, WS_SIZE)):
        a(f"""s_mov_b32 s{dst}, s{src}
s_and_b32 s{dst+1}, s{src+1}, 0xffff
s_mov_b32 s{dst+2}, {hex(size)}
s_mov_b32 s{dst+3}, 0x20000""")

def allreduce_add(a, v, t):
    for m in ("quad_perm:[1,0,3,2]", "quad_perm:[2,3,0,1]", "row_half_mirror", "row_mirror"):
        a(f"s_nop 1\nv_add_f32_dpp v{v}, v{v}, v{v} {m} row_mask:0xf bank_mask:0xf")
    a(f"""v_mov_b32 v{t}, v{v}
s_nop 1
v_permlane16_swap_b32 v{t}, v{v}
s_nop 1
v_add_f32 v{v}, v{v}, v{t}
v_mov_b32 v{t}, v{v}
s_nop 1
v_permlane32_swap_b32 v{t}, v{v}
s_nop 1
v_add_f32 v{v}, v{v}, v{t}""")

def fb0_of(a, dst, c="s5"):
    a(f"s_mul_i32 s{dst}, {c}, 7\ns_lshr_b32 s{dst}, s{dst}, 1")
```

```python
import sys
from asmlib import *; from parts import *
import k0, k1, k2, k3
def build(kernels, out):
    hdr = header([(n, 256, 256, lds) for n, g, lds, vg, ac in kernels])
    src = hdr; desc = '.section .rodata,"a"\n'
    for n, g, lds, vg, ac in kernels:
        a = Asm(); g(a)
        pr = check_hazards(a.lines)
        src += kstart(n) + a.text(); desc += kdesc(n, vg, ac)
        print(n, "instrs:", len([l for l in a.lines if not l.endswith(':') and not l.startswith(';')]), "hazards:", len(pr))
    open(out, "w").write(src + desc)
K0 = ("k0_kernel", k0.gen_k0, 0, 64, 64)
K1 = ("k1_kernel", k1.gen_k1, 3*k1.STAGE+1024, 512, 256)
K2 = ("k2_kernel", k2.gen_k2, k2.L.END, 512, 256)
K3 = ("k3_kernel", k3.gen_k3, 7*k3.STG, 512, 256)
if __name__ == "__main__":
    build([K0, K1, K2, K3], "mk.s")
```

```python
from build_mk import *
def gen_empty(a):
    a("s_endpgm")
E = lambda i: (f"e{i}_kernel", gen_empty, 0, 64, 64)
build([K0,K1,K2,K3], "v_a.s")
build([K0,K1,K2,K3,E(0),E(1),E(2),E(3)], "v_b.s")
build([E(0),E(1),E(2),E(3),K0,K1,K2,K3], "v_c.s")
```

```python
import re

class Asm:
    def __init__(self):
        self.lines = []
    def __call__(self, s):
        for l in s.split("\n"):
            l = l.strip()
            if l: self.lines.append(l)
    def label(self, n): self.lines.append(n + ":")
    def c(self, s): self.lines.append("; " + s)
    def text(self):
        out = []
        for l in self.lines:
            if l.endswith(":") or l.startswith(".") or l.startswith(";"): out.append(l)
            else: out.append("    " + l)
        return "\n".join(out) + "\n"

REG = re.compile(r"\b([vas])\[(\d+):(\d+)\]|\b([vas])(\d+)\b|\b(vcc|exec|m0|scc)\b")
def regs_of(op):
    r = set()
    for m in REG.finditer(op):
        if m.group(1):
            for i in range(int(m.group(2)), int(m.group(3)) + 1): r.add(m.group(1) + str(i))
        elif m.group(4): r.add(m.group(4) + m.group(5))
        else: r.add(m.group(6))
    return r

TRANS = ("v_exp_f32", "v_log_f32", "v_rcp_f32", "v_rsq_f32", "v_sqrt_f32", "v_sin_f32", "v_cos_f32", "v_rcp_iflag_f32")
class Ins:
    __slots__ = ("text", "op", "ops", "kind", "d", "u", "idx", "ann", "nop", "target", "mods", "passes", "srcC", "srcAB")
    def __init__(self, text, idx):
        self.idx = idx
        t, _, cm = text.partition(";")
        self.ann = cm.strip()
        t = t.strip(); self.text = t
        parts = t.split(None, 1)
        self.op = parts[0]
        rest = parts[1] if len(parts) > 1 else ""
        ops = []; cur = ""; depth = 0
        for ch in rest:
            if ch in "[(": depth += 1
            if ch in "])": depth -= 1
            if ch == "," and depth == 0: ops.append(cur.strip()); cur = ""
            else: cur += ch
        if cur.strip(): ops.append(cur.strip())
        self.mods = ""
        if ops:
            last = ops[-1].split(None, 1)
            if len(last) > 1 and not last[0].startswith("hwreg"):
                ops[-1] = last[0]; self.mods = last[1]
        self.ops = ops
        self.d = set(); self.u = set(); self.nop = 1; self.target = None
        self.passes = 0; self.srcC = set(); self.srcAB = set()
        op = self.op
        R = lambda i: regs_of(ops[i]) if i < len(ops) else set()
        if op.startswith("v_mfma"):
            self.kind = "mfma"; self.d = R(0); self.srcAB = R(1) | R(2); self.srcC = R(3); self.u = self.srcAB | self.srcC
            self.passes = 8 if "32x32" in op else 4
        elif op.startswith("v_"):
            self.kind = "valu"
            base = op.replace("_e32", "").replace("_e64", "")
            if base.startswith("v_cmp"):
                self.d = R(0); self.u = R(1) | R(2)
                if base.startswith("v_cmpx"): self.d |= {"exec"}
            elif base in ("v_permlane32_swap_b32", "v_permlane16_swap_b32", "v_swap_b32"):
                self.d = R(0) | R(1); self.u = R(0) | R(1)
            elif base in ("v_add_co_u32", "v_sub_co_u32", "v_subrev_co_u32"):
                self.d = R(0) | R(1); self.u = R(2) | R(3)
            elif base in ("v_addc_co_u32", "v_subb_co_u32"):
                self.d = R(0) | R(1); self.u = R(2) | R(3) | R(4)
            else:
                self.d = R(0)
                for i in range(1, len(ops)): self.u |= R(i)
                if base in ("v_fmac_f32", "v_dot2c_f32_bf16", "v_fmac_f32", "v_writelane_b32", "v_pk_fmac_f16"): self.u |= R(0)
                if base == "v_cndmask_b32" and len(ops) == 3: self.u |= {"vcc"}
        elif op.startswith("ds_"):
            self.kind = "ds"
            if op.startswith("ds_read") or op.startswith("ds_bpermute") or op.startswith("ds_permute") or op.startswith("ds_swizzle"):
                self.d = R(0)
                for i in range(1, len(ops)): self.u |= R(i)
            else:
                for i in range(len(ops)): self.u |= R(i)
        elif op.startswith("buffer_") or op.startswith("global_"):
            self.kind = "vmem"
            islds = " lds" in (" " + self.mods) or op.startswith("global_load_lds")
            if op in ("buffer_wbl2", "buffer_inv"):
                pass
            elif "load" in op and not islds:
                self.d = R(0)
                for i in range(1, len(ops)): self.u |= R(i)
            elif "atomic" in op and "sc0" in self.mods:
                self.d = R(0)
                for i in range(len(ops)): self.u |= R(i)
            else:
                for i in range(len(ops)): self.u |= R(i)
                if islds: self.u |= {"m0"}
        elif op.startswith("s_"):
            self.kind = "salu"
            if op == "s_nop": self.nop = int(ops[0], 0) + 1
            elif op in ("s_branch",) or op.startswith("s_cbranch"): self.target = ops[0]; self.kind = "br"
            elif op in ("s_waitcnt", "s_barrier", "s_endpgm", "s_sleep", "s_setprio"): self.kind = "ctl"
            elif op.startswith("s_cmp") or op.startswith("s_bitcmp"):
                for i in range(len(ops)): self.u |= R(i)
            elif op.startswith("s_load") or op.startswith("s_memtime") or op.startswith("s_memrealtime") or op.startswith("s_buffer_load"):
                self.kind = "smem"; self.d = R(0)
                for i in range(1, len(ops)): self.u |= R(i)
            else:
                self.d = R(0)
                for i in range(1, len(ops)): self.u |= R(i)
                if op in ("s_addk_i32", "s_mulk_i32"): self.u |= R(0)
                if "saveexec" in op: self.d |= {"exec"}; self.u |= {"exec"}
        else:
            raise ValueError("unknown instr: " + text)
    def is_trans(self): return self.op.replace("_e32", "").replace("_e64", "") in TRANS
    def islds_dma(self): return self.kind == "vmem" and (" lds" in (" " + self.mods) or self.op.startswith("global_load_lds"))
    def wide_store(self): return self.kind == "vmem" and ("store" in self.op) and (self.op.endswith("x4") or self.op.endswith("x3"))

def vg(s): return {r for r in s if r[0] in "va" and r not in ("vcc",)}
def sg(s): return {r for r in s if (r[0] == "s" and r != "scc") or r in ("vcc",)}

def need(prod, cons):
    n = 0
    pv, cv_u, cv_d = vg(prod.d), vg(cons.u), vg(cons.d)
    if prod.kind == "valu":
        if cons.kind == "mfma" and pv & cv_u: n = max(n, 2)
        ps = sg(prod.d)
        if ps:
            if cons.kind == "valu" and ps & cons.u:
                n = max(n, 4 if cons.op.startswith(("v_readlane", "v_writelane")) and ps & regs_of(cons.ops[-1]) else 2)
            if cons.kind == "vmem" and ps & cons.u: n = max(n, 5)
            if cons.kind in ("salu", "br") and ps & cons.u: n = max(n, 1)
            if cons.kind == "br" and "vcc" in ps and "vcc" in cons.op: n = max(n, 1)
        if cons.kind == "valu" and cons.op.startswith(("v_readfirstlane", "v_readlane")) and pv & cv_u: n = max(n, 1)
        if cons.kind == "valu" and cons.op.startswith("v_permlane") and pv & cv_u: n = max(n, 2)
        if cons.kind == "valu" and ("dpp" in cons.op or "row_" in cons.mods or "quad_perm" in cons.mods) and pv & cv_u: n = max(n, 2)
        if prod.is_trans() and cons.kind == "valu" and not cons.is_trans() and pv & cv_u: n = max(n, 1)
        if prod.is_trans() and cons.kind == "valu" and cons.is_trans() and pv & cv_u: n = max(n, 0)
        if "exec" in prod.d and cons.kind == "mfma": n = max(n, 4)
    if prod.kind == "valu" and prod.op.startswith("v_dot2"):
        if cons.kind in ("valu", "mfma", "ds", "vmem"):
            same = cons.op == prod.op
            if same:
                ab = regs_of(cons.ops[1]) | regs_of(cons.ops[2])
                if pv & ab: n = max(n, 3)
            elif pv & (cv_u | cv_d): n = max(n, 3)
    if prod.kind == "mfma":
        big = {8: 12, 4: 8}[prod.passes]; ovl = {8: 10, 4: 6}[prod.passes]; war = {8: 7, 4: 3}[prod.passes]
        if cons.kind == "mfma":
            if pv & cons.srcAB: n = max(n, big)
            if pv & cons.srcC and not (cons.srcC == prod.d and cons.passes == prod.passes): n = max(n, ovl)
            if pv & cons.d and not (pv & cons.srcC):
                n = max(n, ovl)
        elif cons.kind in ("valu", "ds", "vmem"):
            if pv & (cv_u | cv_d): n = max(n, big)
            if cons.kind == "valu" and (vg(prod.srcC) & cv_d): n = max(n, war)
    if prod.kind == "salu" and "m0" in prod.d and cons.kind == "vmem" and cons.islds_dma(): n = max(n, 1)
    if prod.wide_store():
        data = vg(regs_of(prod.ops[0])) if prod.op.startswith("buffer") else vg(regs_of(prod.ops[1]))
        if cons.kind == "valu" and cv_d & data: n = max(n, 2)
        elif cons.kind in ("ds", "vmem") and cv_d & data: n = max(n, 1)
    return n

def parse(lines):
    ins = []; labels = {}
    for l in lines:
        l = l.strip()
        if not l or l.startswith(";"): continue
        if l.startswith("."):
            continue
        if re.match(r"^[\w.$]+:$", l):
            labels[l[:-1]] = len(ins); continue
        ins.append(Ins(l, len(ins)))
    return ins, labels

def check_hazards(lines, verbose=True):
    ins, labels = parse(lines)
    preds = [[] for _ in range(len(ins) + 1)]
    for i, x in enumerate(ins):
        if x.op == "s_endpgm": continue
        if x.kind == "br":
            t = labels.get(x.target)
            if t is not None: preds[t].append(i)
            if x.op != "s_branch": preds[i + 1].append(i)
        else:
            preds[i + 1].append(i)
    probs = []
    MAXW = 13
    for i, c in enumerate(ins):
        if c.kind in ("ctl", "br") and not c.u: continue
        stack = [(p, 0) for p in preds[i]]
        seen = {}
        while stack:
            p, w = stack.pop()
            if w >= MAXW: continue
            if seen.get(p, 99) <= w: continue
            seen[p] = w
            pr = ins[p]
            nd = need(pr, c)
            if nd > w: probs.append((pr, c, nd, w))
            for q in preds[p]: stack.append((q, w + pr.nop))
    if verbose:
        for pr, c, nd, w in probs:
            print(f"HAZARD need {nd} have {w}: [{pr.idx}] {pr.text}  ->  [{c.idx}] {c.text}")
    return probs

def trace_check(lines, decide, max_steps=400000, verbose=True):
    ins, labels = parse(lines)
    pc = 0; steps = 0; counts = {}
    vm = []
    lg = []
    probs = []
    def pend_regs(q):
        s = {}
        for x in q:
            for r in x.d: s[r] = x
        return s
    while pc < len(ins) and steps < max_steps:
        x = ins[pc]; steps += 1
        if x.op == "s_endpgm": break
        if x.op == "s_waitcnt":
            t = x.text
            m = re.search(r"vmcnt\((\d+)\)", t)
            if m:
                n = int(m.group(1))
                while len(vm) > n: vm.pop(0)
            m = re.search(r"lgkmcnt\((\d+)\)", t)
            if m:
                n = int(m.group(1))
                if any(o.kind == "smem" for o in lg) and n > 0: probs.append(f"counted lgkmcnt with smem outstanding at [{x.idx}] {x.text}")
                while sum(2 if (o.kind == 'smem' and not o.op.endswith('dword')) else 1 for o in lg) > n and lg: lg.pop(0)
            pc += 1; continue
        touched = x.u | x.d
        for q, nm in ((vm, "vm"), (lg, "lgkm")):
            pr = pend_regs(q)
            for r in touched:
                if r in pr and not (r in x.d and r not in x.u and x.kind == pr[r].kind and x.kind in ("vmem","ds")):
                    probs.append(f"{nm} not waited: [{pr[r].idx}] {pr[r].text} -> [{x.idx}] {x.text} reg {r}")
        if x.kind == "vmem":
            vm.append(x)
            if len(vm) > 63: probs.append(f"vmcnt overflow (>63 outstanding) at [{x.idx}] {x.text}")
        if x.kind in ("ds", "smem"):
            lg.append(x)
            if len([o for o in lg]) > 15 and x.kind == "ds": pass
        if x.kind == "br":
            counts[pc] = counts.get(pc, 0) + 1
            taken = True if x.op == "s_branch" else decide(x, counts[pc])
            pc = labels[x.target] if taken else pc + 1
            continue
        pc += 1
    if verbose:
        seen = set()
        for p in probs:
            if p not in seen: print("WAITCNT:", p); seen.add(p)
    return probs, steps

def fix_hazards(lines, verbose=False):
    total = 0
    for it in range(20):
        probs = check_hazards(lines, verbose=False)
        if not probs: break
        idx = [];
        for li, l in enumerate(lines):
            t = l.strip()
            if not t or t.startswith(";") or t.startswith(".") or re.match(r"^[\w.$]+:$", t): continue
            idx.append(li)
        need_at = {}
        for pr, c, nd, w in probs:
            need_at[c.idx] = max(need_at.get(c.idx, 0), nd - w)
        out = []; ins_lines = {idx[k]: v for k, v in need_at.items()}
        for li, l in enumerate(lines):
            if li in ins_lines:
                n = ins_lines[li]
                if verbose: print("nop", n, "before", l)
                while n > 0:
                    m = min(n, 16); out.append(f"s_nop {m-1}"); n -= m
                total += 1
            out.append(l)
        lines = out
    return lines, total
```

```python
from parts import *
def vr(b, n): return f"v[{b}:{b+n-1}]"

class L:
    K = 0
    V = 24576
    HS = 12288
    TS = 1024
    ONES = 49152
    END = 49152 + 12288 + 1024
Q0, Q1 = 8, 12
KF0, KF1 = 16, 20
VF0, VF1 = 24, 32
S0, S1 = 40, 56
P0, P1 = 72, 80
O0, O1 = 88, 104
NM0, NM1 = 120, 136
CFAR, CDIAG = 152, 168
MFAR = 184
V_KA, V_VA0, V_VA1, V_VINC = 192, 193, 194, 195
V_KA_L, V_VA0_L, V_VA1_L = 196, 197, 198
M0R, M1R = 199, 200
S_QT, S_NMID, S_FAR, S_CNT2 = 55, 56, 57, 58
BIG = "0xff7fffff"

def att_consts(a):
    a(f"""v_and_b32 v2, 31, v1                 ; i = query
v_lshrrev_b32 v3, 5, v1               ; hh
v_lshlrev_b32 v4, 2, v3               ; 4hh
v_mov_b32 v5, {BIG}
v_mov_b32 v6, 0""")
    for r in range(16):
        j0 = 8*(r >> 2) + (r & 3)
        a(f"""v_add_u32 v7, {j0}, v4
v_cmp_gt_u32 vcc, v7, v2             ; j > i
s_nop 1
v_cndmask_b32 v{CFAR+r}, v5, v6, vcc
v_cndmask_b32 v{CDIAG+r}, v6, v5, vcc""")
    for p in range(8):
        a(f"""v_cmp_eq_u32 vcc, 0, v{CFAR+2*p}
v_mov_b32 v7, 0xffff
s_nop 0
v_cndmask_b32 v{MFAR+p}, 0, v7, vcc
v_cmp_eq_u32 vcc, 0, v{CFAR+2*p+1}
v_mov_b32 v7, 0xffff0000
s_nop 0
v_cndmask_b32 v7, 0, v7, vcc
v_or_b32 v{MFAR+p}, v{MFAR+p}, v7""")
    a(f"""v_mov_b32 v4, 0x3f803f80
v_mov_b32 v5, 0x3f803f80
v_mov_b32 v6, 0x3f803f80
v_mov_b32 v7, 0x3f803f80
v_lshlrev_b32 v2, 4, v1
v_add_u32 v2, {L.ONES}, v2
ds_write_b128 v2, v[4:7]
ds_write_b128 v2, v[4:7] offset:{L.HS}""")
    a(f"""v_and_b32 v2, 31, v1
v_lshrrev_b32 v3, 5, v1
v_bfe_u32 v4, v2, 3, 1
v_xor_b32 v3, v3, v4
v_lshl_add_u32 v3, v2, 1, v3
v_lshlrev_b32 v3, 4, v3
s_add_u32 s36, s6, 8
s_mul_i32 s36, s36, {L.TS}
s_add_u32 s37, s36, {L.K}
v_add_u32 v{V_KA_L}, s37, v3
v_bfe_u32 v2, v1, 2, 2                ; rr
v_lshrrev_b32 v3, 5, v1               ; hh'
v_lshl_add_u32 v2, v3, 2, v2          ; 4hh'+rr
v_lshlrev_b32 v2, 5, v2
v_and_b32 v4, 1, v1
v_lshl_add_u32 v5, v4, 4, v2          ; + (cq&1)*16
v_bfe_u32 v6, v1, 1, 1
v_lshl_add_u32 v5, v6, 3, v5          ; + (cq>>1)*8      -> A_q0
v_xor_b32 v6, 16, v5
v_add_u32 v6, 256, v6                 ; A_q1
s_add_u32 s37, s36, {L.V}
v_add_u32 v5, s37, v5
v_add_u32 v6, s37, v6
v_xor_b32 v3, 1, v3
v_lshlrev_b32 v3, 7, v3
v_add_u32 v3, {L.ONES}, v3
v_bfe_u32 v4, v1, 4, 1
v_cmp_eq_u32 vcc, 1, v4
v_mov_b32 v7, {hex((1<<32)-L.TS)}
s_nop 0
v_cndmask_b32 v{V_VA0_L}, v5, v3, vcc
v_cndmask_b32 v{V_VA1_L}, v6, v3, vcc
v_cndmask_b32 v{V_VINC}, v7, 0, vcc""")

def att_counts(a):
    a(f"""s_lshl_b32 s{S_QT}, s4, 2
s_add_u32 s{S_QT}, s{S_QT}, s6          ; qt = 4r+w
s_cmp_ge_u32 s{S_QT}, 8
s_cselect_b32 s{S_FAR}, 1, 0
s_cselect_b32 s{S_NMID}, 7, s{S_QT}""")

def kread(h): return f"ds_read_b128 {vr(KF0+4*h,4)}, v{V_KA} offset:{h*L.HS}"
def vreads(h):
    b = VF0 + 8*h
    return [f"ds_read_b64_tr_b16 {vr(b+4*ks+2*q,2)}, v{V_VA0+q} offset:{h*L.HS+512*ks}" for ks in range(2) for q in range(2)]
def smfma(h, c): return f"v_mfma_f32_32x32x16_bf16 {vr(S0+16*h,16)}, {vr(KF0+4*h,4)}, {vr(Q0+4*h,4)}, {c}"
def pvmfma(h, ks): return f"v_mfma_f32_32x32x16_bf16 {vr(O0+16*h,16)}, {vr(VF0+8*h+4*ks,4)}, {vr(P0+8*h+4*ks,4)}, {vr(O0+16*h,16)}"

def pass1_step(a, nxt):
    for h in range(2):
        m = M0R + h; s = S0 + 16*h
        for i in range(8): a(f"v_max3_f32 v{m}, v{m}, v{s+2*i}, v{s+2*i+1}")
        if nxt is not None:
            if h == 0: a("s_waitcnt lgkmcnt(0)")
            a(smfma(h, nxt))
    if nxt is not None:
        a(f"v_add_u32 v{V_KA}, {hex((1<<32)-L.TS)}, v{V_KA}")
        a(kread(0)); a(kread(1))

def att_pass1(a):
    a(f"v_mov_b32 v{V_KA}, v{V_KA_L}\nv_mov_b32 v{M0R}, {BIG}\nv_mov_b32 v{M1R}, {BIG}")
    a(kread(0)); a(kread(1))
    a("s_waitcnt lgkmcnt(0)")
    a(smfma(0, vr(CDIAG,16))); a(smfma(1, vr(CDIAG,16)))
    a(f"v_add_u32 v{V_KA}, {hex((1<<32)-L.TS)}, v{V_KA}")
    a(kread(0)); a(kread(1))
    a(f"s_mov_b32 s{S_CNT2}, s{S_NMID}\ns_cmp_eq_u32 s{S_CNT2}, 0\ns_nop 7\ns_cbranch_scc1 L_a1_mid_done ; @nomid")
    a.label("L_a1_mid")
    pass1_step(a, "0")
    a(f"s_sub_u32 s{S_CNT2}, s{S_CNT2}, 1\ns_cmp_lg_u32 s{S_CNT2}, 0\ns_cbranch_scc1 L_a1_mid ; @trip=7")
    a.label("L_a1_mid_done")
    a(f"s_cmp_eq_u32 s{S_FAR}, 0\ns_cbranch_scc1 L_a1_nofar ; @nofar")
    pass1_step(a, vr(CFAR,16))
    a("s_nop 3")
    a.label("L_a1_nofar")
    pass1_step(a, None)
    for h in range(2):
        m = M0R + h
        a(f"""v_mov_b32 v2, v{m}
s_nop 1
v_permlane32_swap_b32 v2, v{m}
s_nop 1
v_max_f32 v{m}, v{m}, v2
v_sub_f32 v{m}, 0, v{m}""")
        for r in range(16): a(f"v_mov_b32 v{NM0+16*h+r}, v{m}")

def phase(a, h, mask, extra):
    o = 1 - h
    s = S0 + 16*h; p = P0 + 8*h
    E = [f"v_exp_f32 v{s+r}, v{s+r}" for r in range(16)]
    def C(k):
        t = f"v_cvt_pk_bf16_f32 v{p+k}, v{s+2*k}, v{s+2*k+1}"
        return t
    def MK(k):
        if mask == "far": return f"v_and_b32 v{p+k}, v{p+k}, v{MFAR+k}"
        if mask == "diag": return f"v_bfi_b32 v{p+k}, v{MFAR+k}, 0, v{p+k}"
        return None
    M = [smfma(o, vr(NM0+16*o,16)), pvmfma(o, 0), pvmfma(o, 1)]
    D = vreads(h) + [kread(h)]
    X = list(extra)
    seq = ["s_waitcnt lgkmcnt(0)", M[0], E[0], D[0], E[1], D[1], E[2], C(0), E[3], D[2], E[4], C(1), M[1], E[5], D[3], E[6], C(2), E[7], D[4],
           E[8], C(3), M[2], E[9], "X", E[10], C(4), E[11], "X", E[12], C(5), E[13], "X", E[14], C(6), E[15], "XN", C(7)]
    for s_ in seq:
        if s_ == "X":
            if X: a(X.pop(0))
        elif s_ == "XN":
            a(X.pop(0) if X else "s_nop 0")
        else: a(s_)
    for x in X: a(x)
    if mask:
        for k in range(8): a(MK(k))

def pass2_step(a, mask):
    phase(a, 0, mask, [])
    phase(a, 1, mask, [f"v_add_u32 v{V_KA}, {hex((1<<32)-L.TS)}, v{V_KA}", f"v_add_u32 v{V_VA0}, v{V_VINC}, v{V_VA0}", f"v_add_u32 v{V_VA1}, v{V_VINC}, v{V_VA1}"])

def att_pass2(a):
    for r in range(16): a(f"v_mov_b32 v{O0+r}, 0\nv_mov_b32 v{O1+r}, 0")
    for r in range(8): a(f"v_mov_b32 v{P1+r}, 0\nv_mov_b32 v{VF1+r}, 0")
    a(f"v_mov_b32 v{V_KA}, v{V_KA_L}\nv_mov_b32 v{V_VA0}, v{V_VA0_L}\nv_mov_b32 v{V_VA1}, v{V_VA1_L}")
    a(kread(0)); a(kread(1))
    a("s_waitcnt lgkmcnt(0)")
    a(smfma(0, vr(NM0,16)))
    a(f"v_add_u32 v{V_KA}, {hex((1<<32)-L.TS)}, v{V_KA}")
    a("s_nop 7\ns_nop 1")
    pass2_step(a, "diag")
    a(f"s_mov_b32 s{S_CNT2}, s{S_NMID}\ns_cmp_eq_u32 s{S_CNT2}, 0\ns_cbranch_scc1 L_a2_mid_done ; @nomid")
    a.label("L_a2_mid")
    pass2_step(a, None)
    a(f"s_sub_u32 s{S_CNT2}, s{S_CNT2}, 1\ns_cmp_lg_u32 s{S_CNT2}, 0\ns_cbranch_scc1 L_a2_mid ; @trip=7")
    a.label("L_a2_mid_done")
    a(f"s_cmp_eq_u32 s{S_FAR}, 0\ns_cbranch_scc1 L_a2_nofar ; @nofar")
    pass2_step(a, "far")
    a.label("L_a2_nofar")
    a("s_waitcnt lgkmcnt(0)\ns_nop 1")
    a(pvmfma(1, 0)); a(pvmfma(1, 1))

def att_finish(a, dst0):
    a("s_nop 7\ns_nop 3")
    for h in range(2):
        o = O0 + 16*h
        a(f"v_rcp_f32 v2, v{o+8}\ns_nop 0")
        for r in range(8): a(f"v_mul_f32 v{o+r}, v{o+r}, v2")
        for k in range(4): a(f"v_cvt_pk_bf16_f32 v{dst0+4*h+k}, v{o+2*k}, v{o+2*k+1}")

def gen_k2(a):
    import parts; parts.stamp_reset(2); stamp(a)
    prologue(a, "L_k2_end")
    a(f"""s_and_b32 s36, s6, 1
s_lshl_b32 s37, s5, 1
s_add_u32 s37, s37, s36              ; head
s_lshl_b32 s37, s37, 16              ; *64*1024
s_lshl_b32 s38, s4, 12               ; 4r*1024
s_add_u32 s37, s37, s38
s_lshr_b32 s38, s6, 1
s_mul_i32 s39, s38, {WS_V-WS_K}
s_add_u32 s37, s37, s39
s_add_u32 s37, s37, {WS_K-8192}
s_mul_i32 s39, s38, {L.V-L.K}
s_mul_i32 s38, s36, {L.HS}
s_add_u32 s38, s38, s39
s_add_u32 s38, s38, {L.K}
v_lshlrev_b32 v2, 4, v1""")
    for g in range(3):
        a(f"s_mov_b32 m0, s38\ns_nop 0")
        for i in range(4): a(f"buffer_load_dwordx4 v2, {srd(SWS)}, s37 offen offset:{1024*i} sc1 lds")
        a("s_add_u32 s37, s37, 4096\ns_add_u32 s38, s38, 4096")
    a(f"""s_lshl_b32 s36, s5, 17
s_lshl_b32 s37, s4, 12
s_lshl_b32 s38, s6, 10
s_add_u32 s36, s36, s37
s_add_u32 s36, s36, s38
s_add_u32 s36, s36, {WS_Q}
s_add_u32 s37, s36, 65536
buffer_load_dwordx4 {vr(Q0,4)}, v2, {srd(SWS)}, s36 offen sc1
buffer_load_dwordx4 {vr(Q1,4)}, v2, {srd(SWS)}, s37 offen sc1""")
    att_consts(a); att_counts(a)
    stamp(a)
    a("s_waitcnt vmcnt(0) lgkmcnt(0)\ns_barrier")
    stamp(a)
    att_pass1(a); stamp(a); att_pass2(a); stamp(a); att_finish(a, 72)
    a(f"""s_lshl_b32 s36, s{S_QT}, 15
s_lshl_b32 s37, s5, 11
s_add_u32 s36, s36, s37
s_add_u32 s36, s36, {WS_A}
v_lshlrev_b32 v2, 4, v1
buffer_store_dwordx4 v[72:75], v2, {srd(SWS)}, s36 offen sc1
buffer_store_dwordx4 v[76:79], v2, {srd(SWS)}, s36 offen offset:1024 sc1""")
    a("s_waitcnt vmcnt(0)"); stamp(a); stamp_flush(a)
    a("s_waitcnt vmcnt(0)\nL_k2_end:\ns_endpgm")
```

```python
from asmlib import Asm
from common import *

WS_STATS = 0x0
WS_CS    = 0x10000
WS_K     = 0x100000
WS_V     = 0x300000
WS_Q     = 0x500000
WS_A     = 0x700000
WS_H     = 0x900000
WS_FLAG  = 0x1100000
WS_SIZE  = 0x1200000

SX, SWQ, SWO, SW1, SW2, SOUT, SWS = 8, 12, 16, 20, 24, 28, 32
def srd(n): return f"s[{n}:{n+3}]"
LOG2E = 1.4426950408889634

def f32hex(x):
    import struct
    return "0x%08x" % struct.unpack("<I", struct.pack("<f", x))[0]

def prologue(a, end_label):
    a(f"""s_cmp_ge_u32 s2, 256
s_cbranch_scc1 {end_label}
s_load_dwordx16 s[64:79], s[0:1], 0
s_load_dwordx2 s[80:81], s[0:1], 64
v_lshrrev_b32 v2, 6, v0
v_and_b32 v1, 63, v0
s_and_b32 s3, s2, 7
s_lshr_b32 s7, s2, 3
v_readfirstlane_b32 s6, v2
s_and_b32 s4, s3, 1
s_lshl_b32 s4, s4, 3
s_and_b32 s36, s7, 7
s_add_u32 s4, s4, s36
s_lshr_b32 s5, s3, 1
s_lshl_b32 s5, s5, 2
s_lshr_b32 s36, s7, 3
s_add_u32 s5, s5, s36
s_waitcnt lgkmcnt(0)""")
    for (dst, src, size) in ((SX, 64, 0x200000), (SWQ, 66, 0x180000), (SWO, 68, 0x80000), (SW1, 72, 0x1C0000), (SW2, 74, 0x1C0000), (SOUT, 76, 0x200000), (SWS, 80, WS_SIZE)):
        a(f"""s_mov_b32 s{dst}, s{src}
s_and_b32 s{dst+1}, s{src+1}, 0xffff
s_mov_b32 s{dst+2}, {hex(size)}
s_mov_b32 s{dst+3}, 0x20000""")

def allreduce_add(a, v, t):
    for m in ("quad_perm:[1,0,3,2]", "quad_perm:[2,3,0,1]", "row_half_mirror", "row_mirror"):
        a(f"s_nop 1\nv_add_f32_dpp v{v}, v{v}, v{v} {m} row_mask:0xf bank_mask:0xf")
    a(f"""v_mov_b32 v{t}, v{v}
s_nop 1
v_permlane16_swap_b32 v{t}, v{v}
s_nop 1
v_add_f32 v{v}, v{v}, v{t}
v_mov_b32 v{t}, v{v}
s_nop 1
v_permlane32_swap_b32 v{t}, v{v}
s_nop 1
v_add_f32 v{v}, v{v}, v{t}""")

def fb0_of(a, dst, c="s5"):
    a(f"s_mul_i32 s{dst}, {c}, 7\ns_lshr_b32 s{dst}, s{dst}, 1")

STAMPS = False
STAMP_INS = 's_memrealtime'
WS_STAMP = 0x1180000
class _St: n = 0; kid = 0
def stamp_reset(kid): _St.n = 0; _St.kid = kid; NAMES.clear()
SITES = None
NAMES = []
def stamp(a, name=None):
    if not STAMPS: return
    if SITES is not None and name not in SITES: return
    if SITES is None and name is not None and not name.startswith("*"): return
    NAMES.append(name)
    assert _St.n < 8
    a(f"{STAMP_INS} s[{82+2*_St.n}:{83+2*_St.n}]")
    _St.n += 1
def stamp_flush(a):
    if not STAMPS: return
    lab = f"L_stamp_skip{_St.kid}"
    a(f"s_waitcnt lgkmcnt(0)\ns_cmp_eq_u32 s6, 0\ns_cbranch_scc0 {lab}")
    for i in range(8):
        a(f"v_mov_b32 v{2+i}, s{82+2*i}" if i < _St.n else f"v_mov_b32 v{2+i}, 0")
    a(f"""s_lshl_b32 s36, s2, 5
s_add_u32 s36, s36, {WS_STAMP + _St.kid*0x2000}
v_mov_b32 v10, 0
s_mov_b64 exec, 1
buffer_store_dwordx4 v[2:5], v10, {srd(SWS)}, s36 offen
buffer_store_dwordx4 v[6:9], v10, {srd(SWS)}, s36 offen offset:16
s_mov_b64 exec, -1""")
    a(lab + ":")

def stampval(a, name, sreg):
    if not STAMPS: return
    if SITES is None or name not in SITES: return
    NAMES.append("#" + name)
    a(f"s_mov_b32 s{82+2*_St.n}, s{sreg}")
    _St.n += 1
```

```python
import parts, asmlib
from parts import *
from asmlib import Asm
from collections import deque
def vr(b, n): return f"v[{b}:{b+n-1}]"
def ar(b, n): return f"a[{b}:{b+n-1}]"
XP = {}
FL_E  = WS_FLAG
FL_KV = WS_FLAG + 0x400
FL_H  = WS_FLAG + 0x1400
FL_A  = WS_FLAG + 0x2400
FL_BYTES = 0x3400
SDBG = 60
SPIN_MAX = 1 << 16
OOB = 0x7f000000
XST = 16384; WST = 28672; W0 = 49152
def XS(j): return (j % 3)*XST
L_K = 106496; L_V = L_K + 24576; HS = 1024; TS = 2048
L_Q = L_V + 24576; L_ONES = L_Q + 4096; L_NRM = L_ONES + 2048
L_ONES_SLOW = L_Q
L_CS = 162816; LDS_TOTAL = 163840
W_SLOTS = [0, 32768, 49152, 16384, 65536, 81920, 106496, 122880, 139264]
W_SLOT_OF = {j: W_SLOTS[j % 9] for j in range(18)}
L_RED = 0
S_TOK = 7
S_P, S_U, S_FB0 = 40, 41, 42
S_SX, S_SQ, S_S1 = 43, 45, 46
S_XE, S_QE, S_1E = 48, 49, 50
S_TBA, S_TBB, S_DX, S_DW, S_SPIN = 51, 52, 53, 54, 55
S_T, S_KK, S_TB, S_G = 64, 65, 66, 67
S_W2, S_WO, S_H, S_A, S_LD, S_XO, S_QT, S_SLOW = 68, 69, 70, 71, 72, 73, 74, 75
S_H0A, S_H0B, S_H2A, S_H2B, S_H3 = 56, 57, 58, 59, 44
V_VX = 8; V_VWQ, V_VF, V_VF2 = 12, 13, 14
V_XA, V_XB = 16, 20
V_SET = 24
V_WA, V_WAH = 72, 80
V_ST = 88
ACC = 128
def acc(sl, ab): return ACC + (sl*2+ab)*16 if sl < 3 else ACC + 96
V_ONE = 240
MFAR = 240; V_KA, V_VA0, V_VA1, V_VINC = 248, 249, 250, 251
V_WD, V_AL, V_TR0, V_SLOT = 252, 253, 254, 255
POLL = 124

class VM:
    def __init__(s, a): s.a = a; s.n = 0; s.m = {}
    def op(s, text, tag=None):
        s.a(text); s.n += sum(1 for l in text.split("\n") if l.strip().startswith(("buffer_", "global_")))
        if tag: s.m[tag] = s.n
    def grp(s, text, tag=None): return lambda: s.op(text, tag)
    def mark(s, tag): s.m[tag] = s.n
    def cnt(s, *tags): return min([s.n - s.m[t] for t in tags] + [63])
    def wait(s, *tags, extra=""): s.a(f"s_waitcnt vmcnt({s.cnt(*tags)}){extra}")

def emit(a, g):
    if callable(g): g()
    else: a(g)
class G:
    def __init__(s, pre, main): s.pre = pre; s.main = main
    def all(s, a):
        if s.pre: a(s.pre)
        emit(a, s.main)
class BG:
    def __init__(s): s.q = deque()
    def add(s, text):
        L = [l.strip().split(" ;")[0] for l in text.split("\n") if l.strip() and not l.strip().startswith(";")]
        i = 0
        while i < len(L):
            if L[i].startswith(("s_cmp", "s_bitcmp")):
                k = i + 1
                while k < len(L) and L[k].startswith("s_cselect"): k += 1
                s.q.append((k - i, "\n".join(L[i:k]))); i = k
            else:
                s.q.append((1, L[i])); i += 1
    def atom(s, fn, cost=2): s.q.append((cost, fn))
    def fill(s, a, budget):
        while s.q and budget > 0:
            c, x = s.q.popleft(); emit(a, x); budget -= c
        return budget
    def drain(s, a): s.fill(a, 10**9)
    def __len__(s): return len(s.q)

def lane0_store(a, sreg_off, vdata, srdn=SWS):
    a(f"""v_mov_b32 v2, 0
s_mov_b64 exec, 1
buffer_store_dword v{vdata}, v2, {srd(srdn)}, s{sreg_off} offen sc1
s_mov_b64 exec, -1""")

def poll_check(a, vm, tag, name, reload):
    stamp(a, name + "_pre")
    vm.wait(tag)
    stamp(a, name + "_1st")
    a(f"""v_cmp_ne_u32 vcc, 0, v{POLL}
s_mov_b32 s{S_SPIN}, 0
s_cmp_eq_u64 vcc, -1
s_cbranch_scc1 {name}_ok ; @ok""")
    a.label(name + "_spin")
    a("s_sleep 1")
    a(reload)
    a(f"""s_waitcnt vmcnt(0)
v_cmp_ne_u32 vcc, 0, v{POLL}
s_add_u32 s{S_SPIN}, s{S_SPIN}, 1
s_cmp_eq_u64 vcc, -1
s_cbranch_scc1 {name}_ok ; @ok
s_cmp_lt_u32 s{S_SPIN}, {SPIN_MAX}
s_cbranch_scc1 {name}_spin ; @spin""")
    a.label(name + "_ok")
    parts.stampval(a, name + "_n", S_SPIN)

def srd_build(dst, src, size):
    return f"s_mov_b32 s{dst}, s{src}\ns_and_b32 s{dst+1}, s{src+1}, 0xffff\ns_mov_b32 s{dst+2}, {hex(size)}\ns_mov_b32 s{dst+3}, 0x20000"

def entry(a, vm):
    a(f"""s_cmp_ge_u32 s2, 256
s_cbranch_scc1 L_end
s_load_dwordx16 s[64:79], s[0:1], 0
s_load_dwordx2 s[80:81], s[0:1], 64
s_getpc_b64 s[36:37]
L_pc0:
v_lshrrev_b32 v2, 6, v0
v_and_b32 v1, 63, v0
s_and_b32 s3, s2, 7
s_lshr_b32 s7, s2, 3
v_readfirstlane_b32 s6, v2
s_and_b32 s4, s3, 1
s_lshl_b32 s4, s4, 3
s_and_b32 s38, s7, 7
s_add_u32 s4, s4, s38
s_lshr_b32 s5, s3, 1
s_lshl_b32 s5, s5, 2
s_lshr_b32 s38, s7, 3
s_add_u32 s5, s5, s38
s_mov_b32 s56, s36
s_and_b32 s57, s37, 0xffff
s_mov_b32 s58, L_end-L_pc0
s_mov_b32 s59, 0x20000
s_lshl_b32 s38, s7, 2
s_add_u32 s38, s38, s6
s_lshl_b32 s38, s38, 10
v_lshlrev_b32 v2, 4, v1""")
    vm.op("buffer_load_dwordx4 v[244:247], v2, s[56:59], s38 offen", "codepf")

def p1_setup(a):
    a(f"""s_lshr_b32 s{S_P}, s6, 1
s_and_b32 s{S_U}, s6, 1
s_lshl_b32 s{S_FB0}, s5, 2
v_lshrrev_b32 v2, 3, v1
v_and_b32 v3, 7, v1
v_lshrrev_b32 v24, 4, v1
v_xor_b32 v24, v3, v24
v_lshlrev_b32 v24, 4, v24
v_lshl_add_u32 v{V_VX}, v2, 10, v24
v_xor_b32 v25, 64, v{V_VX}
v_add_u32 v{V_VX+1}, 0x2000, v25
v_add_u32 v{V_VX+2}, 0x4000, v{V_VX}
v_add_u32 v{V_VX+3}, 0x6000, v25
v_bfe_u32 v24, v1, 4, 1
v_lshlrev_b32 v24, 2, v24
v_xor_b32 v24, v3, v24
v_lshlrev_b32 v24, 4, v24
v_mul_u32_u24 v25, 0xe00, v2
v_add_u32 v{V_VF}, v25, v24
v_add_u32 v{V_VF2}, {8*3584}, v{V_VF}
v_lshrrev_b32 v2, 2, v1
v_and_b32 v3, 3, v1
v_lshlrev_b32 v3, 4, v3
v_mul_u32_u24 v25, 0xc00, v2
v_add_u32 v{V_VWQ}, v25, v3
s_lshr_b32 s39, s4, 1
s_lshl_b32 s36, s4, 7
s_lshl_b32 s37, s6, 5
s_add_u32 s36, s36, s37
s_lshl_b32 s36, s36, 10
s_add_u32 s{S_XE}, s36, 1024
s_lshl_b32 s37, s39, 7
s_add_u32 s{S_SX}, s36, s37
s_lshl_b32 s36, s39, 2
s_add_u32 s36, s36, s6
s_mul_i32 s37, s36, {16*3072}
s_lshl_b32 s38, s5, 6
s_add_u32 s{S_SQ}, s37, s38
s_add_u32 s{S_QE}, s38, {512*3072}
s_mul_i32 s37, s36, {16*3584}
s_lshl_b32 s38, s5, 8
s_add_u32 s{S_S1}, s37, s38
s_add_u32 s{S_1E}, s38, {512*3584}
s_cmp_ge_u32 s5, 14
s_cselect_b32 s{S_S1}, {hex(OOB)}, s{S_S1}
s_cselect_b32 s{S_1E}, -1, s{S_1E}
s_lshl_b32 s{S_DX}, s6, 12
s_mul_i32 s{S_DW}, s6, 7168
s_add_u32 s{S_DW}, s{S_DW}, {W0}
s_lshl_b32 s36, s4, 7
s_lshl_b32 s37, s5, 3
s_add_u32 s36, s36, s37
s_lshl_b32 s37, s6, 1
s_add_u32 s{S_TOK}, s36, s37""")

def p1_setup2():
    t = f"""v_and_b32 v2, 31, v1
v_lshrrev_b32 v3, 5, v1
v_bfe_u32 v24, v2, 1, 3
v_xor_b32 v24, v3, v24
v_lshlrev_b32 v24, 4, v24
v_lshl_add_u32 v24, v2, 7, v24
s_lshl_b32 s3, s{S_P}, 1
s_add_u32 s36, s3, s{S_U}
s_xor_b32 s37, s36, 1
s_lshl_b32 s38, s4, 2
s_add_u32 s{S_TBA}, s38, s36
s_add_u32 s{S_TBB}, s38, s37
s_lshl_b32 s36, s36, 12
s_lshl_b32 s37, s37, 12
v_add_u32 v{V_XA}, s36, v24
v_add_u32 v{V_XB}, s37, v24
"""
    for ks in range(1, 4):
        t += f"v_xor_b32 v{V_XA+ks}, {32*ks}, v{V_XA}\nv_xor_b32 v{V_XB+ks}, {32*ks}, v{V_XB}\n"
    t += f"""v_bfe_u32 v24, v1, 2, 2
v_lshl_add_u32 v25, v3, 3, v24
v_lshlrev_b32 v26, 6, v25
v_bfe_u32 v27, v1, 4, 1
v_lshl_add_u32 v26, v27, 5, v26
v_and_b32 v28, 3, v1
v_lshl_add_u32 v26, v28, 3, v26
v_lshlrev_b32 v29, 7, v25
v_lshlrev_b32 v27, 1, v27
v_lshrrev_b32 v30, 1, v28
v_add_u32 v27, v27, v30
v_lshrrev_b32 v24, 1, v24
v_lshlrev_b32 v24, 2, v24
v_xor_b32 v27, v27, v24
v_lshl_add_u32 v29, v27, 4, v29
v_and_b32 v28, 1, v28
v_lshl_add_u32 v29, v28, 3, v29
v_xor_b32 v30, 64, v29
v_add_u32 v{V_WA+6}, {W0+3072+2048}, v30
s_cmp_eq_u32 s{S_U}, 0
s_cselect_b64 s[38:39], -1, 0
"""
    tab = [((26, 0, 256), (29, 3072+2048, 512)),
           ((26, 1024, 256), (26, 2048, 256)),
           ((29, 3072, 512), (30, 3072, 512))]
    for sl, (e0, e1) in enumerate(tab):
        for q in range(2):
            t += f"v_add_u32 v31, {W0+e0[1]+q*e0[2]}, v{e0[0]}\nv_add_u32 v32, {W0+e1[1]+q*e1[2]}, v{e1[0]}\nv_cndmask_b32 v{V_WA+2*sl+q}, v32, v31, s[38:39]\n"
    for i in range(7): t += f"v_add_u32 v{V_WAH+i}, {2*WST}, v{V_WA+i}\n"
    for i in range(4): t += f"v_mov_b32 v{V_ONE+i}, 0x3f803f80\n"
    return t

CSB = ((0, 5), (1, 2), (3, 4))

def p1_dma(vm, j):
    t = f"p1b{j}"; g = []
    def add(pre, main, tag=None):
        if j >= 2 and ((XP.get("noq") and srd(SWQ) in main) or (XP.get("nox") and srd(SX) in main) or (XP.get("nof") and srd(SW1) in main)): main = "s_nop 0"
        g.append(G(pre, vm.grp(main, tag)))
    add(f"s_add_u32 m0, s{S_DX}, {XS(j)}", f"buffer_load_dwordx4 v{V_VX}, {srd(SX)}, s{S_SX} offen lds")
    for i in range(1, 4):
        add("s_addk_i32 m0, 1024", f"buffer_load_dwordx4 v{V_VX+i}, {srd(SX)}, s{S_SX} offen lds")
    add(f"s_add_u32 m0, s{S_DW}, {(j % 3)*WST}", f"buffer_load_dwordx4 v{V_VWQ}, {srd(SWQ)}, s{S_SQ} offen lds")
    add(None, f"buffer_load_dwordx4 v{V_VWQ}, {srd(SWQ)}, s{S_SQ} offen offset:1024 lds")
    add(None, f"buffer_load_dwordx4 v{V_VWQ}, {srd(SWQ)}, s{S_SQ} offen offset:2048 lds")
    add("s_addk_i32 m0, 3072", f"buffer_load_dwordx4 v{V_VF}, {srd(SW1)}, s{S_S1} offen lds")
    add("s_addk_i32 m0, 1024", f"buffer_load_dwordx4 v{V_VF2}, {srd(SW1)}, s{S_S1} offen lds")
    add(f"s_addk_i32 m0, {1024-128}", f"buffer_load_dwordx4 v{V_VF}, {srd(SW1)}, s{S_S1} offen offset:128 lds")
    add("s_addk_i32 m0, 1024", f"buffer_load_dwordx4 v{V_VF2}, {srd(SW1)}, s{S_S1} offen offset:128 lds", t)
    adv = []
    for (s, e, step, span) in ((S_SX, S_XE, 128, 1024), (S_SQ, S_QE, 64*3072, 512*3072), (S_S1, S_1E, 64*3584, 512*3584)):
        adv.append(f"s_add_u32 s{s}, s{s}, {step}\ns_cmp_ge_u32 s{s}, s{e}\ns_cselect_b32 s3, {span}, 0\ns_sub_u32 s{s}, s{s}, s3")
    return g, adv

def p1_reads(j, ks, st):
    b = V_SET + 24*st
    def x(reg, base): return f"ds_read_b128 {vr(reg,4)}, v{base+ks} offset:{XS(j)}"
    hi = (j % 3 == 2)
    def w(blk, q):
        off = (0 if hi else (j % 3)*WST) + ks*7168
        if blk < 3: return f"ds_read_b64_tr_b16 {vr(b+8+4*blk+2*q,2)}, v{(V_WAH if hi else V_WA)+2*blk+q} offset:{off}"
        return f"ds_read_b64_tr_b16 {vr(b+20+2*q,2)}, v{(V_WAH if hi else V_WA)+6} offset:{off+512*q}"
    return [x(b, V_XA), w(0,0), w(0,1), x(b+4, V_XB), w(1,0), w(1,1), w(2,0), w(2,1), w(3,0), w(3,1)]

def p1_mfmas(st, first=False):
    b = V_SET + 24*st
    xa, xb = vr(b,4), vr(b+4,4)
    W = lambda k: vr(b+8+4*k,4)
    out = []
    for sl in range(3):
        for ab, x in ((0, xa), (1, xb)):
            d = vr(acc(sl,ab),16)
            out.append(f"v_mfma_f32_32x32x16_bf16 {d}, {W(sl)}, {x}, {'0' if first else d}")
    d = vr(acc(3,0),16)
    out.append(f"v_mfma_f32_32x32x16_bf16 {d}, {W(3)}, {xa}, {'0' if first else d}")
    return out
def cs_mfmas(st, first):
    b = V_SET + 24*st
    return [f"v_mfma_f32_32x32x16_bf16 {ar(16*k,16)}, {vr(V_ONE,4)}, {vr(b+8+4*k,4)}, {'0' if first else ar(16*k,16)}" for k in range(4)]

CAP = 5
def emit_atomic(a, t):
    a(t); return None
def p1_kstep(a, st, rd, heavy, must, bg, first=False, bar=None, extra=None, early=None, late=None):
    m = p1_mfmas(st, first)
    a("s_waitcnt lgkmcnt(0)")
    rd = list(rd); heavy = list(heavy)
    for i, mm in enumerate(m):
        a(mm); bud = CAP
        if i == 0 and bar: emit(a, bar); bud -= 2
        hv = heavy.pop(0) if (i in (0, 2, 4) and not (i == 0 and bar) and heavy) else None
        if hv and hv.pre: a(hv.pre); bud -= 1 + hv.pre.count("\n")
        n = 0
        while rd and n < 2: a(rd.pop(0)); n += 1; bud -= 1
        if hv: emit(a, hv.main); bud -= 2
        if early and i <= 1: early = emit_atomic(a, early); bud -= 4
        if late and i == 5: late = emit_atomic(a, late); bud -= 4
        if bud > 0: bud = must.fill(a, bud)
        if bud > 0 and not must: bg.fill(a, bud)
    if extra:
        lab, par, mms = extra
        a(f"s_bitcmp{par}_b32 s4, 0\ns_cbranch_scc0 {lab} ; @cs")
        for mm in mms: a(mm)
        a.label(lab)
    for e in heavy: e.all(a)

R0, R1 = 88, 92
def stats_stream(vm):
    L = []
    U = [96, 104]; S = [112, 113]; T = [114, 115]; Q = [116, 117]
    A = lambda t: L.extend(x for x in t.split("\n") if x)
    for k, R in enumerate((R0, R1)):
        for j in range(4): A(f"v_lshlrev_b32 v{U[k]+2*j}, 16, v{R+j}\nv_and_b32 v{U[k]+2*j+1}, 0xffff0000, v{R+j}")
    for k in range(2): A(f"v_add_f32 v{S[k]}, v{U[k]}, v{U[k]+1}")
    for j in range(2, 8):
        for k in range(2): A(f"v_add_f32 v{S[k]}, v{S[k]}, v{U[k]+j}")
    def allred(R):
        for m in ("quad_perm:[1,0,3,2]", "quad_perm:[2,3,0,1]", "row_half_mirror", "row_mirror"):
            for k in range(2): A(f"v_add_f32_dpp v{R[k]}, v{R[k]}, v{R[k]} {m} row_mask:0xf bank_mask:0xf")
        for sw in ("v_permlane16_swap_b32", "v_permlane32_swap_b32"):
            for k in range(2): A(f"v_mov_b32 v{T[k]}, v{R[k]}")
            for k in range(2): A(f"{sw} v{T[k]}, v{R[k]}")
            for k in range(2): A(f"v_add_f32 v{R[k]}, v{R[k]}, v{T[k]}")
    allred(S)
    for k in range(2): A(f"v_mul_f32 v{S[k]}, {f32hex(1/512)}, v{S[k]}")
    for j in range(8):
        for k in range(2): A(f"v_sub_f32 v{U[k]+j}, v{U[k]+j}, v{S[k]}")
    for k in range(2): A(f"v_mul_f32 v{Q[k]}, v{U[k]}, v{U[k]}")
    for j in range(1, 8):
        for k in range(2): A(f"v_fmac_f32 v{Q[k]}, v{U[k]+j}, v{U[k]+j}")
    allred(Q)
    for k in range(2): A(f"v_mov_b32 v{T[k]}, {f32hex(1e-5)}\nv_fmac_f32 v{T[k]}, {f32hex(1/512)}, v{Q[k]}")
    for k in range(2): A(f"v_rsq_f32 v{T[k]}, v{T[k]}")
    A(f"v_mov_b32 v120, v{S[0]}\nv_mov_b32 v122, v{S[1]}\nv_mov_b32 v121, v{T[0]}\nv_mov_b32 v123, v{T[1]}")
    return L
def stats_store(a, vm):
    a(f"s_lshl_b32 s36, s{S_TOK}, 3\nv_mov_b32 v2, 0\ns_mov_b64 exec, 1")
    vm.op(f"buffer_store_dwordx4 v[120:123], v2, {srd(SWS)}, s36 offen offset:{WS_STATS} sc1")
    a("s_mov_b64 exec, -1")

def zero_flags(a):
    a(f"""s_cmp_eq_u32 s2, 0
s_cbranch_scc0 L_nozero ; @nz
v_mov_b32 v124, 0
v_mov_b32 v125, 0
v_mov_b32 v126, 0
v_mov_b32 v127, 0
v_lshlrev_b32 v2, 4, v1
s_lshl_b32 s36, s6, 12
s_add_u32 s36, s36, {WS_FLAG}""")
    for i in range(4): a(f"buffer_store_dwordx4 v[124:127], v2, {srd(SWS)}, s36 offen offset:{1024*i} sc1")
    a.label("L_nozero")
def go_store(a):
    a(f"""s_or_b32 s36, s2, s6
s_cmp_eq_u32 s36, 0
s_cbranch_scc0 L_nogo ; @nz
v_mov_b32 v3, 1
s_mov_b32 s36, 0""")
    lane0_store(a, 36, 3, SDBG)
    a.label("L_nogo")
GO_LD = f"v_mov_b32 v2, 0\nbuffer_load_dword v{POLL}, v2, {srd(SDBG)}, 0 offen sc1"

def cs_store(a):
    a(f"""v_accvgpr_read_b32 v118, a0
v_accvgpr_read_b32 v119, a16
v_accvgpr_read_b32 v126, a32
v_accvgpr_read_b32 v127, a48
s_cmp_eq_u32 s{S_P}, 0
s_cbranch_scc0 L_nocs ; @p1
s_lshl_b32 s36, s4, 4
s_add_u32 s36, s36, s5
s_lshl_b32 s36, s36, 10
s_add_u32 s36, s36, {WS_CS}
v_and_b32 v2, 31, v1
v_lshlrev_b32 v2, 2, v2
s_mov_b32 exec_hi, 0""")
    for sl, reg in ((0, 118), (1, 119), (2, 126)):
        a(f"""s_mul_i32 s37, s{S_U}, {(CSB[sl][1]-CSB[sl][0])*128}
s_add_u32 s37, s37, {CSB[sl][0]*128}
s_add_u32 s37, s37, s36
buffer_store_dword v{reg}, v2, {srd(SWS)}, s37 offen sc1""")
    a(f"buffer_store_dword v127, v2, {srd(SWS)}, s36 offen offset:768 sc1\ns_mov_b64 exec, -1")
    a.label("L_nocs")
def early_flag(a):
    a(f"""s_cmp_eq_u32 s6, 0
s_cbranch_scc0 L_nofe ; @w
s_lshl_b32 s36, s4, 4
s_add_u32 s36, s36, s5
s_lshl_b32 s36, s36, 2
s_add_u32 s36, s36, {FL_E}
v_mov_b32 v3, 1""")
    lane0_store(a, 36, 3)
    a.label("L_nofe")
def early_poll_load():
    return f"""v_and_b32 v2, 15, v1
s_lshl_b32 s36, s4, 4
v_add_u32 v3, s36, v2
v_lshlrev_b32 v4, 4, v2
v_add_u32 v4, s5, v4
v_bfe_u32 v5, v1, 4, 1
v_cmp_eq_u32 vcc, 1, v5
s_mov_b32 s36, {FL_E}
v_cndmask_b32 v3, v3, v4, vcc
v_lshlrev_b32 v3, 2, v3
buffer_load_dword v{POLL}, v3, {srd(SWS)}, s36 offen sc1"""
def gather_loads(q, vm):
    q.add(f"s_lshl_b32 s78, s5, 10\ns_add_u32 s78, s78, {WS_CS}\nv_lshlrev_b32 v112, 2, v0")
    for rr in range(16):
        q.atom(vm.grp(f"buffer_load_dword v{96+rr}, v112, {srd(SWS)}, s78 offen sc1"), 1)
        if rr < 15: q.add("s_add_u32 s78, s78, 16384")
    q.add(f"v_and_b32 v113, 31, v1\nv_lshlrev_b32 v113, 3, v113\ns_lshl_b32 s78, s{S_TBA}, 8\ns_lshl_b32 s79, s{S_TBB}, 8")
    q.atom(vm.grp(f"buffer_load_dwordx2 v[{V_ST}:{V_ST+1}], v113, {srd(SWS)}, s78 offen offset:{WS_STATS} sc1"), 1)
    q.atom(vm.grp(f"buffer_load_dwordx2 v[{V_ST+2}:{V_ST+3}], v113, {srd(SWS)}, s79 offen offset:{WS_STATS} sc1", "gather"), 1)
def gather_sum(q, vm):
    q.atom(lambda: vm.wait("gather"), 1)
    for rr in range(1, 16): q.add(f"v_add_f32 v96, v96, v{96+rr}")
    q.add(f"v_add_u32 v112, {L_CS}, v112\nds_write_b32 v112, v96")

MF_A, CSF = 96, 104
def corr_stream(q):
    q.add(f"v_and_b32 v113, 31, v1\nv_lshlrev_b32 v113, 2, v113\nv_add_u32 v113, {L_CS}, v113")
    for sl in range(3):
        q.add(f"s_mul_i32 s78, s{S_U}, {(CSB[sl][1]-CSB[sl][0])*128}\ns_add_u32 s78, s78, {CSB[sl][0]*128}\nv_add_u32 v112, s78, v113\nds_read_b32 v{120+sl}, v112")
    q.add(f"ds_read_b32 v123, v113 offset:768\nv_cmp_gt_u32_e64 s[76:77], 32, v1")
    for dst, m in ((MF_A, V_ST), (MF_A+4, V_ST+2)):
        q.add(f"""v_cvt_pk_bf16_f32 v{dst}, -v{m}, -v{m}
v_lshlrev_b32 v113, 16, v{dst}
v_sub_f32_e64 v113, -v{m}, v113
v_cvt_pk_bf16_f32 v{dst+1}, v113, 0
v_cndmask_b32 v{dst}, 0, v{dst}, s[76:77]
v_cndmask_b32 v{dst+1}, 0, v{dst+1}, s[76:77]
v_mov_b32 v{dst+2}, 0
v_mov_b32 v{dst+3}, 0""")
def corr_stream2(q):
    for i in range(4):
        dst = CSF + 4*i; cs = 120 + i
        q.add(f"""v_cvt_pk_bf16_f32 v{dst+1}, v{cs}, 0
v_lshlrev_b32 v126, 16, v{dst+1}
v_sub_f32 v126, v{cs}, v126
v_cvt_pk_bf16_f32 v{dst}, v{cs}, v126
v_mov_b32 v{dst+2}, 0
v_mov_b32 v{dst+3}, 0""")
def corr_mfmas(a, order):
    for sl, ab in order:
        d = vr(acc(sl,ab),16)
        a(f"v_mfma_f32_32x32x16_bf16 {d}, {vr(CSF+4*sl,4)}, {vr(MF_A+4*ab,4)}, {d}")

def const_stream(q):
    q.add(srd_build(SWO, 68, 0x80000)); q.add(srd_build(SW2, 74, 0x1C0000)); q.add(srd_build(SOUT, 76, 0x200000))
    q.add("v_and_b32 v112, 31, v1\nv_lshrrev_b32 v113, 5, v1\nv_lshlrev_b32 v113, 2, v113\nv_sub_u32 v113, v113, v112")
    for p in range(8):
        j0 = 8*((2*p) >> 2) + ((2*p) & 3)
        q.add(f"""v_add_u32 v114, {j0}, v113
v_cmp_lt_i32_e64 s[76:77], 0, v114
v_mov_b32 v115, 0xffff
v_add_u32 v114, {j0+1}, v113
v_cndmask_b32 v{MFAR+p}, 0, v115, s[76:77]
v_cmp_lt_i32_e64 s[76:77], 0, v114
v_mov_b32 v115, 0xffff0000
v_mov_b32 v116, 0
v_cndmask_b32 v115, v116, v115, s[76:77]
v_or_b32 v{MFAR+p}, v{MFAR+p}, v115""")
    q.add(f"""v_and_b32 v112, 31, v1
v_lshrrev_b32 v113, 5, v1
v_bfe_u32 v114, v112, 3, 1
v_xor_b32 v113, v113, v114
v_lshl_add_u32 v113, v112, 1, v113
v_lshlrev_b32 v{V_SLOT}, 4, v113
s_add_u32 s78, s6, 8
s_lshl_b32 s78, s78, 11
s_add_u32 s79, s78, {L_K}
v_add_u32 v{V_KA}, s79, v{V_SLOT}
v_bfe_u32 v112, v1, 2, 2
v_lshrrev_b32 v113, 5, v1
v_lshl_add_u32 v112, v113, 2, v112
v_lshlrev_b32 v112, 5, v112
v_and_b32 v114, 1, v1
v_lshl_add_u32 v115, v114, 4, v112
v_bfe_u32 v116, v1, 1, 1
v_lshl_add_u32 v115, v116, 3, v115
v_xor_b32 v116, 16, v115
v_add_u32 v116, 256, v116
s_add_u32 s79, s78, {L_V}
v_add_u32 v115, s79, v115
v_add_u32 v116, s79, v116
v_xor_b32 v113, 1, v113
v_lshlrev_b32 v113, 7, v113
s_add_u32 s79, s6, 8
s_lshl_b32 s79, s79, 3
s_add_u32 s79, s79, {L_ONES}
v_add_u32 v113, s79, v113
v_bfe_u32 v114, v1, 4, 1
v_cmp_eq_u32_e64 s[76:77], 1, v114
v_mov_b32 v117, {hex((1<<32)-TS)}
v_mov_b32 v114, -8
v_cndmask_b32 v{V_VA0}, v115, v113, s[76:77]
v_cndmask_b32 v{V_VA1}, v116, v113, s[76:77]
v_cndmask_b32 v{V_VINC}, v117, v114, s[76:77]""")
    q.add(f"""v_lshrrev_b32 v112, 4, v1
v_and_b32 v113, 15, v1
s_lshl_b32 s78, s4, 2
v_add_u32 v114, s78, v113
v_cmp_le_u32_e64 s[76:77], 8, v114
v_mov_b32 v115, 0x3f803f80
v_lshlrev_b32 v113, 3, v113
v_and_b32 v114, 1, v112
v_cndmask_b32 v116, 0, v115, s[76:77]
v_lshl_add_u32 v113, v114, 7, v113
v_lshrrev_b32 v112, 1, v112
v_lshl_add_u32 v113, v112, 9, v113
v_add_u32 v113, {L_ONES}, v113
v_mov_b32 v117, v116
ds_write_b64 v113, v[116:117]
ds_write_b64 v113, v[116:117] offset:{HS}""")
    q.add(f"""s_and_b32 s{S_T}, s6, 1
s_lshr_b32 s{S_KK}, s6, 1
s_lshr_b32 s78, s5, 3
s_lshl_b32 s78, s78, 1
s_lshl_b32 s79, s4, 2
s_add_u32 s78, s78, s79
s_add_u32 s{S_TB}, s78, s{S_T}
s_and_b32 s{S_G}, s5, 7
v_lshrrev_b32 v112, 3, v1
v_and_b32 v113, 7, v1
v_bfe_u32 v114, v1, 4, 1
v_lshlrev_b32 v114, 2, v114
v_xor_b32 v113, v113, v114
v_lshlrev_b32 v113, 4, v113
v_lshl_add_u32 v{V_WD}, v112, 10, v113
v_lshlrev_b32 v{V_AL}, 4, v1
v_bfe_u32 v112, v1, 2, 2
v_lshrrev_b32 v113, 5, v1
v_lshl_add_u32 v113, v113, 2, v112
v_lshlrev_b32 v113, 7, v113
v_bfe_u32 v114, v1, 4, 1
v_lshlrev_b32 v114, 1, v114
v_bfe_u32 v115, v1, 1, 1
v_add_u32 v114, v114, v115
v_lshrrev_b32 v112, 1, v112
v_lshlrev_b32 v112, 2, v112
v_xor_b32 v114, v114, v112
v_lshl_add_u32 v113, v114, 4, v113
v_and_b32 v114, 1, v1
v_lshl_add_u32 v113, v114, 3, v113
s_mul_i32 s78, s{S_KK}, 8192
v_add_u32 v{V_TR0}, s78, v113
s_lshl_b32 s78, s{S_G}, 7
s_lshl_b32 s79, s{S_T}, 13
s_add_u32 s78, s78, s79
s_mul_i32 s79, s{S_KK}, {56*16*1024}
s_add_u32 s{S_W2}, s78, s79
s_sub_u32 s{S_W2}, s{S_W2}, 16384
s_mul_i32 s79, s{S_KK}, {16*16*1024}
s_add_u32 s{S_WO}, s78, s79
s_sub_u32 s{S_WO}, s{S_WO}, 16384
s_mul_i32 s78, s{S_TB}, {112*1024}
s_mul_i32 s79, s{S_KK}, {56*1024}
s_add_u32 s78, s78, s79
s_add_u32 s{S_H}, s78, {WS_H}
s_lshl_b32 s78, s{S_TB}, 15
s_lshl_b32 s79, s{S_KK}, 14
s_add_u32 s78, s78, s79
s_add_u32 s{S_A}, s78, {WS_A}
s_mul_i32 s78, s{S_KK}, 8192
s_lshl_b32 s79, s{S_T}, 10
s_add_u32 s{S_LD}, s78, s79
s_lshl_b32 s{S_QT}, s4, 2
s_add_u32 s{S_QT}, s{S_QT}, s6""")
    q.add(f"""s_mul_i32 s{S_H0A}, s{S_TBA}, {112*1024}
s_mul_i32 s{S_H0B}, s{S_TBB}, {112*1024}
s_lshl_b32 s78, s{S_FB0}, 11
s_add_u32 s78, s78, {WS_H}
s_add_u32 s{S_H0A}, s{S_H0A}, s78
s_add_u32 s{S_H0B}, s{S_H0B}, s78
s_add_u32 s{S_H3}, s{S_H0A}, {3*2048}
s_lshl_b32 s79, s{S_U}, 11
s_add_u32 s{S_H2A}, s{S_H0A}, s79
s_add_u32 s{S_H2B}, s{S_H0B}, s79
s_add_u32 s{S_H0A}, s{S_H0A}, {2*2048}
s_add_u32 s{S_H0B}, s{S_H0B}, {2*2048}
s_cmp_eq_u32 s{S_U}, 0
s_cselect_b32 s{S_H0A}, {hex(OOB)}, s{S_H0A}
s_cselect_b32 s{S_H0B}, {hex(OOB)}, s{S_H0B}
s_cmp_ge_u32 s5, 14
s_cselect_b32 s{S_H0A}, {hex(OOB)}, s{S_H0A}
s_cselect_b32 s{S_H0B}, {hex(OOB)}, s{S_H0B}
s_cselect_b32 s{S_H2A}, {hex(OOB)}, s{S_H2A}
s_cselect_b32 s{S_H2B}, {hex(OOB)}, s{S_H2B}
s_cselect_b32 s{S_H3}, {hex(OOB)}, s{S_H3}""")

def w_stage_groups(vm, j):
    slot = W_SLOT_OF[j]; g = []
    sr, so = (srd(SW2), f"s{S_W2}") if j < 14 else (srd(SWO), f"s{S_WO}")
    for ks in range(4):
        g.append(G(f"s_add_u32 m0, s{S_LD}, {slot + ks*2048}\ns_add_u32 {so}, {so}, 16384",
                   vm.grp(f"buffer_load_dwordx4 v{V_WD}, {sr}, {so} offen lds", f"w{j}" if ks == 3 else None)))
    return g

def prologue(a, vm):
    entry(a, vm)
    p1_setup(a)
    a(p1_setup2())
    a("s_waitcnt lgkmcnt(0)")
    stamp(a, "karg")
    a(srd_build(SX, 64, 0x200000))
    a(f"s_lshl_b32 s36, s{S_TOK}, 10\ns_add_u32 s37, s36, 1024\nv_lshlrev_b32 v2, 4, v1")
    vm.op(f"buffer_load_dwordx4 {vr(R0,4)}, v2, {srd(SX)}, s36 offen")
    vm.op(f"buffer_load_dwordx4 {vr(R1,4)}, v2, {srd(SX)}, s37 offen", "rows")
    a(srd_build(SWQ, 66, 0x180000)); a(srd_build(SW1, 72, 0x1C0000))
    d0, adv0 = p1_dma(vm, 0)
    for g in d0: g.all(a)
    for t in adv0: a(t)
    a(srd_build(SWS, 80, WS_SIZE)); a(srd_build(SDBG, 78, 256))
    zero_flags(a)
    d1, adv1 = p1_dma(vm, 1)
    st = stats_stream(vm)
    vm.wait("rows")
    per = (len(st) + 10)//11
    for g in d1:
        g.all(a)
        for x in st[:per]: a(x)
        st = st[per:]
    for t in adv1: a(t)
    stats_store(a, vm)
    stamp(a, "issued")
    vm.wait("p1b0"); a("s_barrier")
    stamp(a, "*b0")
    go_store(a)
    for r in p1_reads(0, 0, 0): a(r)

def p1_main(a, vm):
    bg = BG(); const_stream(bg)
    pend = None
    for j in range(8):
        H = {0: [], 1: [], 2: [], 3: []}; M = {k: BG() for k in range(4)}
        if j + 2 <= 7:
            if j == 0:
                pend, advn = p1_dma(vm, 2)
                H[0] += pend[0:4]; H[1] += pend[4:8]; H[2] += pend[8:11]
            else:
                H[0] += pend[0:3]; H[1] += pend[3:6]; H[2] += pend[6:9]
            ADV = advn
        else: ADV = None
        if j + 3 <= 7:
            dn2, advn2 = p1_dma(vm, j + 3)
            H[3] += dn2[0:2]; nxt = dn2[2:]
        bar = (lambda jj=j: (vm.wait(f"p1b{jj+1}"), a("s_barrier"))) if j < 7 else None
        if j == 0:
            M[1].atom(lambda: vm.op(GO_LD, "go"), 2)
        if j == 1:
            M[0].atom(lambda: (cs_store(a), vm.mark("csst")), 8)
            M[1].atom(lambda: poll_check(a, vm, "go", "L_go", GO_LD), 5)
            bar = (lambda: (vm.wait("p1b2", "csst"), a("s_barrier")))
        if j == 2: M[0].atom(lambda: early_flag(a), 6)
        if j == 5: M[2].atom(lambda: vm.op(early_poll_load(), "epoll"), 8)
        if j == 6:
            M[0].atom(lambda: poll_check(a, vm, "epoll", "L_ep", early_poll_load()), 5)
            gather_loads(M[0], vm)
        if j == 7:
            gather_sum(M[0], vm)
            M[1].atom(lambda: a("s_waitcnt lgkmcnt(0)\ns_barrier"), 2)
            corr_stream(M[1]); corr_stream2(M[2])
            w0 = w_stage_groups(vm, 0); w1 = w_stage_groups(vm, 1); w2 = w_stage_groups(vm, 2)
            H[0] += w0[:3]; H[1] += w0[3:] + w1[:2]; H[2] += w1[2:] + w2[:1]; H[3] += w2[1:]
        stamp(a, f"body{j}")
        must = BG()
        for ks in range(4):
            st = ks & 1
            must.q.extend(M[ks].q)
            if ks < 3: rd = p1_reads(j, ks+1, 1-st)
            elif j < 7: rd = p1_reads(j+1, 0, 0)
            else: rd = []
            ex = (f"L_cs{ks}", ks >> 1, cs_mfmas(st, ks % 2 == 0)) if j == 0 else None
            p1_kstep(a, st, rd, H[ks], must, bg if 1 <= j < 6 else BG(), first=(j == 0 and ks == 0), bar=(bar if ks == 3 else None), extra=ex,
                     early=(ADV[ks-1] if (ADV and ks in (1, 2)) else None), late=(ADV[2] if (ADV and ks == 2) else None))
            if ks == 3: must.drain(a)
        if j == 5: bg.drain(a)
        if j + 3 <= 7: pend = nxt; advn = advn2

Q0, Q1 = 8, 12
V_MK, V_MQ, V_MKOWN = 92, 93, 127
def scale_tile(a, accb, sreg, hi):
    sel = "op_sel:[0,1] op_sel_hi:[1,1]" if hi else "op_sel:[0,0] op_sel_hi:[1,0]"
    for r in range(0, 16, 2):
        a(f"v_pk_mul_f32 v[{accb+r}:{accb+r+1}], v[{accb+r}:{accb+r+1}], v[{sreg}:{sreg+1}] {sel}")
def pack_tile(a, accb, dst, relu=False):
    for r in range(8): a(f"v_cvt_pk_bf16_f32 v{dst+r}, v{accb+2*r}, v{accb+2*r+1}")
    if relu:
        for r in range(8): a(f"v_pk_max_i16 v{dst+r}, v{dst+r}, 0")
def norm_tile(a, src, m):
    a(f"v_dot2_f32_bf16 v2, v{src}, v{src}, 0\nv_dot2_f32_bf16 v3, v{src+4}, v{src+4}, 0")
    for i in range(1, 4):
        a(f"v_dot2_f32_bf16 v2, v{src+i}, v{src+i}, v2\nv_dot2_f32_bf16 v3, v{src+4+i}, v{src+4+i}, v3")
    a(f"s_nop 2\nv_max3_f32 v{m}, v{m}, v2, v3")
def allmax2(a, r0, r1, t0, t1):
    R = (r0, r1); T = (t0, t1)
    for m in ("quad_perm:[1,0,3,2]", "quad_perm:[2,3,0,1]", "row_half_mirror", "row_mirror"):
        for k in range(2): a(f"v_max_f32_dpp v{R[k]}, v{R[k]}, v{R[k]} {m} row_mask:0xf bank_mask:0xf")
    for sw in ("v_permlane16_swap_b32", "v_permlane32_swap_b32"):
        for k in range(2): a(f"v_mov_b32 v{T[k]}, v{R[k]}")
        for k in range(2): a(f"{sw} v{T[k]}, v{R[k]}")
        for k in range(2): a(f"v_max_f32 v{R[k]}, v{R[k]}, v{T[k]}")

def p1_epilogue(a, vm):
    corr_mfmas(a, [(1,0), (1,1), (0,0), (0,1), (2,0), (2,1), (3,0)])
    a(f"""s_lshl_b32 s36, s5, 17
s_mul_i32 s38, s{S_U}, {WS_V-WS_K}
s_add_u32 s36, s36, s38
s_add_u32 s36, s36, {WS_K}
s_lshl_b32 s37, s{S_TBA}, 10
s_add_u32 s76, s36, s37
s_lshl_b32 s37, s{S_TBB}, 10
s_add_u32 s77, s36, s37
s_mul_i32 s38, s{S_U}, {L_V-L_K}
s_add_u32 s38, s38, {L_K + 8*TS}
s_and_b32 s36, s{S_TBA}, 3
s_lshl_b32 s36, s36, 11
s_add_u32 s36, s36, s38
v_add_u32 v4, s36, v{V_SLOT}
s_and_b32 s36, s{S_TBB}, 3
s_lshl_b32 s36, s36, 11
s_add_u32 s36, s36, s38
v_add_u32 v5, s36, v{V_SLOT}
v_mul_f32 v94, {f32hex(0.25*LOG2E)}, v{V_ST+1}
v_mul_f32 v95, {f32hex(0.25*LOG2E)}, v{V_ST+3}
v_mov_b32 v{V_MK}, {f32hex(1e-30)}
v_mov_b32 v{V_MQ}, 0""")
    for ab, t in ((0, 24), (1, 32)):
        scale_tile(a, acc(1,ab), V_ST+2*ab, True)
        pack_tile(a, acc(1,ab), t)
        a(f"s_add_u32 s37, s{76+ab}, 65536")
        vm.op(f"buffer_store_dwordx4 {vr(t,4)}, v{V_SLOT}, {srd(SWS)}, s{76+ab} offen sc1")
        vm.op(f"buffer_store_dwordx4 {vr(t+4,4)}, v{V_SLOT}, {srd(SWS)}, s37 offen sc1", "kvst")
        a(f"ds_write_b128 v{4+ab}, {vr(t,4)}\nds_write_b128 v{4+ab}, {vr(t+4,4)} offset:{HS}")
    stamp(a, "kvissued")
    for sl, ab in ((2,0), (2,1), (3,0)): pack_tile(a, acc(sl,ab), acc(sl,ab), relu=True)
    a(f"s_cmp_eq_u32 s{S_U}, 0\ns_cbranch_scc0 L_epi_u1 ; @u1")
    norm_tile(a, 24, V_MK); norm_tile(a, 32, V_MK)
    scale_tile(a, acc(0,0), 94, False); pack_tile(a, acc(0,0), Q0)
    scale_tile(a, acc(0,1), 94, True); pack_tile(a, acc(0,1), 56)
    a(f"""s_lshl_b32 s36, s{S_P}, 11
s_add_u32 s36, s36, {L_Q}
v_add_u32 v4, s36, v{V_AL}
ds_write_b128 v4, v[56:59]
ds_write_b128 v4, v[60:63] offset:1024""")
    norm_tile(a, Q0, V_MQ); norm_tile(a, 56, V_MQ)
    allmax2(a, V_MK, V_MQ, 2, 3)
    a(f"""s_lshl_b32 s36, s{S_P}, 3
s_add_u32 s36, s36, {L_NRM}
v_mov_b32 v4, s36
ds_write_b64 v4, v[{V_MK}:{V_MK+1}]
s_branch L_epi_j""")
    a.label("L_epi_u1")
    for ab in range(2): pack_tile(a, acc(0,ab), acc(0,ab), relu=True)
    a.label("L_epi_j")
    a(f"v_mov_b32 v{V_MKOWN}, v{V_MK}")
    a("s_waitcnt lgkmcnt(0)\ns_barrier")

def h_store_groups(vm, counted=True):
    out = []
    lst = [(acc(2,0), S_H2A), (acc(2,1), S_H2B), (acc(3,0), S_H3), (acc(0,0), S_H0A), (acc(0,1), S_H0B)]
    for k, (t, so) in enumerate(lst):
        for half in range(2):
            txt = f"buffer_store_dwordx4 {vr(t+4*half,4)}, v{V_AL}, {srd(SWS)}, s{so} offen offset:{1024*half} sc1"
            out.append(vm.grp(txt, "hst" if (k == 4 and half == 1) else None) if counted else txt)
    return out

KF0 = 16; VF0 = 24; S0 = 40; P0 = 72; O0 = 88
def kread(h): return f"ds_read_b128 {vr(KF0+4*h,4)}, v{V_KA} offset:{h*HS}"
def vreads(h):
    b = VF0 + 8*h
    return [f"ds_read_b64_tr_b16 {vr(b+4*ks+2*q,2)}, v{V_VA0+q} offset:{h*HS+512*ks}" for ks in range(2) for q in range(2)]
def smfma(h): return f"v_mfma_f32_32x32x16_bf16 {vr(S0+16*h,16)}, {vr(KF0+4*h,4)}, {vr(Q0+4*h,4)}, 0"
def pvmfma(h, ks, first=False):
    return f"v_mfma_f32_32x32x16_bf16 {vr(O0+16*h,16)}, {vr(VF0+8*h+4*ks,4)}, {vr(P0+8*h+4*ks,4)}, {'0' if first else vr(O0+16*h,16)}"
def phase(a, h, mask, M, D, X):
    s = S0 + 16*h; p = P0 + 8*h
    E = [f"v_exp_f32 v{s+r}, v{s+r}" for r in range(16)]
    C = lambda k: f"v_cvt_pk_bf16_f32 v{p+k}, v{s+2*k}, v{s+2*k+1}"
    M = list(M) + [None]*(3-len(M)); D = list(D) + [None]*(5-len(D)); X = list(X)
    seq = ["s_waitcnt lgkmcnt(0)", M[0], E[0], D[0], E[1], D[1], E[2], C(0), E[3], D[2], E[4], C(1), M[1], E[5], D[3], E[6], C(2), E[7], D[4],
           E[8], C(3), M[2], E[9], "X", E[10], C(4), E[11], "X", E[12], C(5), E[13], "X", E[14], C(6), E[15], "X", C(7)]
    for s_ in seq:
        if s_ is None: continue
        if s_ == "X":
            if X: emit(a, X.pop(0))
        else: a(s_)
    for x in X: emit(a, x)
    if mask == "far":
        for k in range(8): a(f"v_and_b32 v{p+k}, v{p+k}, v{MFAR+k}")
    if mask == "diag":
        for k in range(8): a(f"v_bfi_b32 v{p+k}, v{MFAR+k}, 0, v{p+k}")
ADV_K = f"v_add_u32 v{V_KA}, {hex((1<<32)-TS)}, v{V_KA}"
ADV_V = [f"v_add_u32 v{V_VA0}, v{V_VINC}, v{V_VA0}", f"v_add_u32 v{V_VA1}, v{V_VINC}, v{V_VA1}"]

def att_step0(a, vm):
    a(f"""s_cmp_eq_u32 s{S_U}, 0
s_cbranch_scc1 L_qown ; @u0
s_lshl_b32 s36, s{S_P}, 11
s_add_u32 s36, s36, {L_Q}
v_add_u32 v4, s36, v{V_AL}
ds_read_b128 {vr(Q0,4)}, v4
ds_read_b128 {vr(Q1,4)}, v4 offset:1024""")
    a.label("L_qown")
    a(f"v_mov_b32 v4, {L_NRM}\nds_read_b128 v[120:123], v4")
    a(kread(0)); a(kread(1))
    a("s_waitcnt lgkmcnt(0)")
    a(smfma(0))
    a("v_max_f32 v125, v120, v122\nv_max_f32 v126, v121, v123\ns_nop 7")
    phase(a, 0, "diag", [smfma(1)], vreads(0), [])
    phase(a, 1, "diag", [None, pvmfma(0,0,True), pvmfma(0,1)], vreads(1), [])

def kv_poll_load():
    return f"""v_and_b32 v2, 3, v1
v_bfe_u32 v3, v1, 2, 1
v_add_u32 v3, 1, v3
v_sub_u32 v4, s4, v3
v_lshlrev_b32 v5, 4, v4
v_add_u32 v5, s5, v5
v_lshl_add_u32 v5, v5, 2, v2
v_lshlrev_b32 v5, 2, v5
v_add_u32 v5, {FL_KV - FL_E}, v5
s_lshl_b32 s36, s4, 4
s_add_u32 s36, s36, s5
s_lshl_b32 s36, s36, 2
v_mov_b32 v3, s36
v_cmp_gt_i32 vcc, 0, v4
s_mov_b32 s36, {FL_E}
v_cndmask_b32 v5, v5, v3, vcc
buffer_load_dword v{POLL}, v5, {srd(SWS)}, s36 offen sc1"""
def wflag_off(base):
    return f"s_lshl_b32 s36, s4, 4\ns_add_u32 s36, s36, s5\ns_lshl_b32 s36, s36, 2\ns_add_u32 s36, s36, s6\ns_lshl_b32 s36, s36, 2\ns_add_u32 s36, s36, {base}"

def att_sync(a, vm):
    vm.wait("kvst")
    stamp(a, "kvdone")
    a(wflag_off(FL_KV)); lane0_store(a, 36, V_MKOWN)
    a(f"s_cmp_eq_u32 s6, 0\ns_cbranch_scc0 L_sync_hs ; @w123")
    a(kv_poll_load())
    a(f"""s_waitcnt vmcnt(0)
v_cmp_ne_u32 vcc, 0, v{POLL}
s_mov_b32 s{S_SPIN}, 0
s_cmp_eq_u64 vcc, -1
s_cbranch_scc1 L_kv_ok ; @ok""")
    a.label("L_kv_spin")
    a("s_sleep 1"); a(kv_poll_load())
    a(f"""s_waitcnt vmcnt(0)
v_cmp_ne_u32 vcc, 0, v{POLL}
s_add_u32 s{S_SPIN}, s{S_SPIN}, 1
s_cmp_eq_u64 vcc, -1
s_cbranch_scc1 L_kv_ok ; @ok
s_cmp_lt_u32 s{S_SPIN}, {SPIN_MAX}
s_cbranch_scc1 L_kv_spin ; @spin""")
    a.label("L_kv_ok")
    stamp(a, "kvok")
    parts.stampval(a, "L_kv_n", S_SPIN)
    for m in range(2):
        for hd in range(2):
            a(f"""s_lshl_b32 s37, s5, 17
s_lshl_b32 s38, s4, 12
s_add_u32 s37, s37, s38
s_add_u32 s37, s37, {(WS_V if m else WS_K) - 8192 + hd*65536}""")
            for grp, need in ((1, 1), (0, 2)):
                a(f"s_add_u32 s38, s37, {4096*grp}\ns_cmp_ge_u32 s4, {need}\ns_cselect_b32 s39, s38, {hex(OOB)}")
                for i in range(4):
                    kt = 4*grp + i
                    a(f"s_mov_b32 m0, {(L_V if m else L_K) + hd*HS + kt*TS - 1024*i}")
                    a(f"buffer_load_dwordx4 v{V_AL}, {srd(SWS)}, s39 offen offset:{1024*i} sc1 lds")
    a(f"""v_max_f32_dpp v{POLL}, v{POLL}, v{POLL} quad_perm:[1,0,3,2] row_mask:0xf bank_mask:0xf
v_max_f32_dpp v{POLL}, v{POLL}, v{POLL} quad_perm:[2,3,0,1] row_mask:0xf bank_mask:0xf
v_max_f32_dpp v{POLL}, v{POLL}, v{POLL} row_half_mirror row_mask:0xf bank_mask:0xf
v_max_f32 v{POLL}, v{POLL}, v125
v_mul_f32 v{POLL}, v{POLL}, v126
v_mov_b32 v4, {L_NRM+16}
ds_write_b32 v4, v{POLL}
s_waitcnt vmcnt(0) lgkmcnt(0)
s_branch L_sync_j""")
    a.label("L_sync_hs")
    for t in h_store_groups(vm, counted=False): a(t)
    a.label("L_sync_j")
    a("s_barrier")
    vm.mark("join")
    a(f"""v_mov_b32 v4, {L_NRM+16}
ds_read_b32 v{POLL}, v4
s_waitcnt lgkmcnt(0)
v_cmp_nge_f32 vcc, {f32hex(1024.0)}, v{POLL}
s_cmp_lg_u64 vcc, 0
s_cselect_b32 s{S_SLOW}, 1, 0""")
    a(f"s_cmp_eq_u32 s6, 0\ns_cbranch_scc0 L_sync_h0 ; @w123")
    for t in h_store_groups(vm, counted=False)[:6]: a(t)
    a.label("L_sync_h0")
    vm.mark("hst")

def h_flag(a, vm):
    vm.wait("hst", "join")
    a(wflag_off(FL_H)); a("v_mov_b32 v3, 1"); lane0_store(a, 36, 3)
def h_poll_load():
    return f"s_lshl_b32 s36, s4, 8\ns_add_u32 s36, s36, {FL_H}\nv_lshlrev_b32 v2, 2, v1\nbuffer_load_dword v{POLL}, v2, {srd(SWS)}, s36 offen sc1"
def h_load(vm, i):
    return vm.grp(f"buffer_load_dwordx4 {ar(4*i,4)}, v{V_AL}, {srd(SWS)}, s{S_H} offen sc1\ns_add_u32 s{S_H}, s{S_H}, 1024", f"h{i}")

class AP:
    wpf = (1, 2)
    hflag = 3; hpoll = 5; hchk = 6

def att_rest(a, vm):
    a(f"s_cmp_lg_u32 s{S_SLOW}, 0\ns_cbranch_scc1 L_slow ; @slow")
    a(ADV_K); a(ADV_V[0]); a(ADV_V[1])
    a(kread(0)); a(kread(1))
    a("s_waitcnt lgkmcnt(0)")
    a(smfma(0)); a(ADV_K)
    hq = [h_load(vm, i) for i in range(56)]
    wq = []
    for j in (3, 4, 5): wq += [(lambda g=g: g.all(a)) for g in w_stage_groups(vm, j)]
    for s in range(1, 9):
        mask = "far" if s == 8 else None
        stamp(a, f"as{s}")
        XA, XB = [], []
        if s in AP.wpf: XA += wq[:3]; XB += wq[3:6]; wq = wq[6:]
        if s == AP.hflag: XA.append(lambda: h_flag(a, vm))
        if s == AP.hpoll: XB.append(lambda: vm.op(h_poll_load(), "hpoll"))
        if s == AP.hchk: XA.append(lambda: poll_check(a, vm, "hpoll", "L_hp", h_poll_load()))
        if s >= AP.hchk:
            n = 4
            if s == AP.hchk: take = hq[:n]; hq = hq[n:]; XB += take
            else: take = hq[:2*n]; hq = hq[2*n:]; XA += take[:n]; XB += take[n:]
        last = (s == 8)
        MA = [smfma(1), pvmfma(1,0, first=(s == 1)), pvmfma(1,1)]
        phase(a, 0, mask, MA, vreads(0) + ([] if last else [kread(0)]), XA)
        MB = [None if last else smfma(0), pvmfma(0,0), pvmfma(0,1)]
        phase(a, 1, mask, MB, vreads(1) + ([] if last else [kread(1)]), ([ADV_K, ADV_V[0], ADV_V[1]] + XB) if not last else XB)
    for g in wq: g()
    a("s_waitcnt lgkmcnt(0)\ns_nop 1")
    a(pvmfma(1, 0)); a(pvmfma(1, 1))
    a.label("L_att_fin")
    return hq

def att_finish(a, vm):
    for h in range(2):
        o = O0 + 16*h
        a(f"v_rcp_f32 v{2+h}, v{o+8}")
        for r in range(8): a(f"v_mul_f32 v{o+r}, v{o+r}, v{2+h}")
        for k in range(4): a(f"v_cvt_pk_bf16_f32 v{72+4*h+k}, v{o+2*k}, v{o+2*k+1}")
    a(f"s_lshl_b32 s36, s{S_QT}, 15\ns_lshl_b32 s37, s5, 11\ns_add_u32 s36, s36, s37\ns_add_u32 s36, s36, {WS_A}")
    vm.op(f"buffer_store_dwordx4 v[72:75], v{V_AL}, {srd(SWS)}, s36 offen sc1")
    vm.op(f"buffer_store_dwordx4 v[76:79], v{V_AL}, {srd(SWS)}, s36 offen offset:1024 sc1", "astores")

def att_slow(a, vm, nh):
    import k2
    k2.L.K, k2.L.V, k2.L.HS, k2.L.TS, k2.L.ONES = L_K, L_V, HS, TS, L_ONES_SLOW
    k2.S_QT, k2.S_NMID, k2.S_FAR, k2.S_CNT2 = S_QT, 76, 77, 78
    a.label("L_slow")
    a("s_waitcnt vmcnt(0)")
    a(wflag_off(FL_H)); a("v_mov_b32 v3, 1"); lane0_store(a, 36, 3)
    vmx = VM(a)
    for j in (3, 4, 5):
        for g in w_stage_groups(vmx, j): g.all(a)
    k2.att_consts(a); k2.att_counts(a)
    a("s_waitcnt lgkmcnt(0)")
    k2.att_pass1(a); k2.att_pass2(a)
    a(f"s_mov_b32 s{S_SPIN}, 0")
    a.label("L_slow_hp")
    a(h_poll_load())
    a(f"""s_waitcnt vmcnt(0)
v_cmp_ne_u32 vcc, 0, v{POLL}
s_add_u32 s{S_SPIN}, s{S_SPIN}, 1
s_cmp_eq_u64 vcc, -1
s_cbranch_scc1 L_slow_hok ; @ok
s_sleep 1
s_cmp_lt_u32 s{S_SPIN}, {SPIN_MAX}
s_cbranch_scc1 L_slow_hp ; @spin""")
    a.label("L_slow_hok")
    for i in range(nh):
        a(f"buffer_load_dwordx4 {ar(4*i,4)}, v{V_AL}, {srd(SWS)}, s{S_H} offen sc1\ns_add_u32 s{S_H}, s{S_H}, 1024")
    a("s_waitcnt vmcnt(0)\ns_nop 7\ns_nop 7\ns_branch L_att_fin")

WF = 16; YA, SA = 40, 72; V_X, V_STAT = 104, 112; V_OA = 12
V_TRN = [[8, 9], [10, 11], [13, 14]]
NST = 18; NK = 72
def p3_wreads(n):
    j, ks = divmod(n, 4); st = n % 3
    off = W_SLOT_OF[j] + ks*2048; out = []
    for nb in range(2):
        for q in range(2):
            o = off + q*1024
            out.append(f"ds_read_b64_tr_b16 {vr(WF+8*st+4*nb+2*q,2)}, v{V_TRN[o >> 16][nb]} offset:{o & 0xffff}")
    return out
def act_reg(n):
    if n < 56: return 4*n
    i = n - 56
    return 224 + 4*i if i < 8 else 4*(i-8)
def p3_mf(n):
    st = n % 3; accb = YA if n < 56 else SA; first = n in (0, 56)
    return [f"v_mfma_f32_32x32x16_bf16 {vr(accb+16*nb,16)}, {vr(WF+8*st+4*nb,4)}, {ar(act_reg(n),4)}, {'0' if first else vr(accb+16*nb,16)}" for nb in range(2)]
def a_poll_load():
    return f"s_lshl_b32 s36, s4, 8\ns_add_u32 s36, s36, {FL_A}\nv_lshlrev_b32 v2, 2, v1\nbuffer_load_dword v{POLL}, v2, {srd(SWS)}, s36 offen sc1"
def a_flag(a, vm):
    vm.wait("astores")
    a(wflag_off(FL_A)); a("v_mov_b32 v3, 1"); lane0_store(a, 36, 3)
def final_loads(a, vm):
    a(f"v_and_b32 v2, 31, v1\ns_lshl_b32 s36, s{S_TB}, 5\nv_add_u32 v2, s36, v2\nv_lshlrev_b32 v3, 3, v2")
    vm.op(f"buffer_load_dwordx2 v[{V_STAT}:{V_STAT+1}], v3, {srd(SWS)}, 0 offen offset:{WS_STATS} sc1")
    a(f"""v_lshlrev_b32 v2, 10, v2
v_lshrrev_b32 v3, 5, v1
v_lshl_add_u32 v{V_OA}, v3, 3, v2
s_lshl_b32 s36, s{S_G}, 7
s_lshl_b32 s37, s{S_KK}, 6
s_add_u32 s{S_XO}, s36, s37""")
    for q in range(4):
        vm.op(f"buffer_load_dwordx2 v[{V_X+2*q}:{V_X+2*q+1}], v{V_OA}, {srd(SX)}, s{S_XO} offen offset:{16*q}", "xfin" if q == 3 else None)

class PP: rate = 3; aflag = 3; apoll = 30; achk = 36

def p3_main(a, vm, hq):
    a(f"v_mov_b32 v8, v{V_TR0}\nv_xor_b32 v9, 64, v{V_TR0}\nv_add_u32 v10, 0x10000, v8\nv_add_u32 v11, 0x10000, v9\nv_add_u32 v13, 0x20000, v8\nv_add_u32 v14, 0x20000, v9")
    vm.wait("w0"); a("s_barrier")
    for r in p3_wreads(0) + p3_wreads(1): a(r)
    items = []
    nh0 = 56 - len(hq)
    for i, g in enumerate(hq): items.append([0, nh0 + i, "h", g])
    for j in range(6, 18):
        avail = 0 if j < 9 else 4*(j-8) + 2
        for k, g in enumerate(w_stage_groups(vm, j)): items.append([avail, 4*j - 4 + k*0.1, "w", (lambda g=g: g.all(a))])
    for i in range(16):
        reg = 224 + 4*i if i < 8 else 4*(i-8)
        items.append([PP.achk, 56 + i, "a", vm.grp(f"buffer_load_dwordx4 {ar(reg,4)}, v{V_AL}, {srd(SWS)}, s{S_A} offen sc1\ns_add_u32 s{S_A}, s{S_A}, 1024", f"at{i}")])
    for n in range(NK):
        j, ks = divmod(n, 4)
        if ks == 0 and parts.STAMPS:
            before = len(parts.NAMES); stamp(a, f"st{j}")
            if len(parts.NAMES) > before: a("s_waitcnt lgkmcnt(0)")
        tag = f"h{n}" if n < 56 else f"at{n-56}"
        vm.wait(tag, extra=f" lgkmcnt({4 if n < NK-1 else 0})")
        m = p3_mf(n)
        nx = p3_wreads(n+2) if n + 2 < NK else []
        if ks == 2 and j + 1 < NST:
            vm.wait(f"w{j+1}"); a("s_barrier")
        a(m[0])
        for r in nx[:2]: a(r)
        a(m[1])
        for r in nx[2:]: a(r)
        if n == PP.aflag: a_flag(a, vm)
        if n == 8: final_loads(a, vm)
        if n == PP.apoll: vm.op(a_poll_load(), "apoll")
        if n == PP.achk: poll_check(a, vm, "apoll", "L_ap", a_poll_load())
        for _ in range(PP.rate):
            cand = [it for it in items if it[0] <= n]
            firsts = {}
            for it in items:
                if it[2] not in firsts: firsts[it[2]] = it
            cand = [it for it in firsts.values() if it[0] <= n]
            if not cand: break
            it = min(cand, key=lambda x: x[1]); items.remove(it); it[3]()
    assert not items, len(items)

def final(a, vm):
    vm.wait("xfin")
    a("s_barrier")
    a(f"""s_lshl_b32 s36, s{S_T}, 1
s_xor_b32 s37, s{S_KK}, 1
s_add_u32 s37, s37, s36
s_lshl_b32 s37, s37, 13
s_add_u32 s36, s36, s{S_KK}
s_lshl_b32 s36, s36, 13
v_lshlrev_b32 v2, 4, v1
v_add_u32 v3, s37, v2
v_add_u32 v4, s36, v2
s_cmp_eq_u32 s{S_KK}, 0
s_cbranch_scc0 L_fin_w1 ; @kk1""")
    def wr(nb):
        for i in range(4): a(f"ds_write_b128 v3, {vr(YA+16*nb+4*i,4)} offset:{L_RED+1024*i}")
        for i in range(4): a(f"ds_write_b128 v3, {vr(SA+16*nb+4*i,4)} offset:{L_RED+4096+1024*i}")
    wr(1)
    a("s_branch L_fin_w2")
    a.label("L_fin_w1")
    wr(0)
    for i in range(16): a(f"v_mov_b32 v{YA+i}, v{YA+16+i}\nv_mov_b32 v{SA+i}, v{SA+16+i}")
    a.label("L_fin_w2")
    a("s_waitcnt lgkmcnt(0)\ns_barrier")
    T = 120
    for i in range(4): a(f"ds_read_b128 {vr(T+4*i,4)}, v4 offset:{L_RED+1024*i}")
    for i in range(4): a(f"ds_read_b128 {vr(T+16+4*i,4)}, v4 offset:{L_RED+4096+1024*i}")
    a(f"v_mul_f32 v13, {f32hex(-LOG2E)}, v{V_STAT+1}")
    a("s_waitcnt lgkmcnt(4)")
    for i in range(16): a(f"v_add_f32 v{YA+i}, v{YA+i}, v{T+i}")
    for r in range(16): a(f"v_mul_f32 v{T+r}, v{YA+r}, v13")
    a("s_waitcnt lgkmcnt(0)")
    for r in range(16): a(f"v_exp_f32 v{T+r}, v{T+r}\nv_add_f32 v{SA+r}, v{SA+r}, v{T+16+r}")
    for r in range(16): a(f"v_add_f32 v{T+r}, 1.0, v{T+r}\nv_mul_f32 v{SA+r}, v{SA+r}, v{YA+r}")
    for r in range(16): a(f"v_rcp_f32 v{T+r}, v{T+r}\nv_mul_f32 v{SA+r}, v{SA+r}, v{V_STAT+1}")
    for q in range(4):
        for hlf in range(2):
            xr = V_X + 2*q + hlf; r = 4*q + 2*hlf
            a(f"""v_lshlrev_b32 v14, 16, v{xr}
v_and_b32 v15, 0xffff0000, v{xr}
v_fma_f32 v14, v{SA+r}, v{T+r}, v14
v_fma_f32 v15, v{SA+r+1}, v{T+r+1}, v15
v_cvt_pk_bf16_f32 v{xr}, v14, v15""")
        a(f"buffer_store_dwordx2 v[{V_X+2*q}:{V_X+2*q+1}], v{V_OA}, {srd(SOUT)}, s{S_XO} offen offset:{16*q}")

def gen(a):
    vm = VM(a)
    parts.stamp_reset(0); stamp(a, "*start")
    prologue(a, vm)
    p1_main(a, vm)
    stamp(a, "*p1end")
    p1_epilogue(a, vm)
    stamp(a, "*epi")
    att_step0(a, vm)
    stamp(a, "step0")
    att_sync(a, vm)
    stamp(a, "*sync")
    hq = att_rest(a, vm)
    att_finish(a, vm)
    stamp(a, "*att")
    p3_main(a, vm, hq)
    stamp(a, "p3end")
    final(a, vm)
    if parts.STAMPS: a("s_waitcnt vmcnt(0)")
    stamp(a, "*end")
    stamp_flush(a)
    a("s_endpgm")
    att_slow(a, vm, 56 - len(hq))
    a.label("L_end")
    a("s_endpgm")

def build(out, stamps=False, ins="s_memrealtime"):
    parts.STAMPS = stamps; parts.STAMP_INS = ins
    a = Asm(); gen(a)
    a.lines, nfix = asmlib.fix_hazards(a.lines)
    pr = asmlib.check_hazards(a.lines)
    n = len([l for l in a.lines if not l.endswith(':') and not l.startswith(';')])
    src = header([(None, 256, 256, LDS_TOTAL)]) + kstart(KN+"_kernel") + a.text() + '.section .rodata,"a"\n' + kdesc(KN+"_kernel", 512, 256, 100)
    open(out, "w").write(src)
    print(out, "instrs:", n, "nops inserted:", nfix, "hazards:", len(pr))
    return a
def build_sites(out, sites, ins="s_memrealtime"):
    parts.SITES = set(sites); build(out, True, ins); names = list(parts.NAMES); parts.SITES = None
    open(out + ".names", "w").write(" ".join(names))
SITESETS = {
 "a": ["*start", "karg", "issued", "*b0", "body1", "body3", "body5", "body6"],
 "b": ["*start", "body6", "body7", "*p1end", "kvissued", "*epi", "step0", "kvdone"],
 "c": ["*start", "kvdone", "kvok", "L_kv_n", "*sync", "as2", "as5", "*att"],
 "d": ["*start", "*att", "st1", "st4", "st9", "st14", "p3end", "*end"],
 "e": ["*start", "L_hp_pre", "L_hp_1st", "L_hp_n", "L_ap_pre", "L_ap_1st", "L_ap_n", "*end"],
}
if __name__ == "__main__":
    D = "gen/"
    build(D + "f2.s")
    for k, v in SITESETS.items(): build_sites(D + f"f2_{k}.s", v)
```

```python
import parts, asmlib
from parts import *
from asmlib import Asm
from collections import deque
def vr(b, n): return f"v[{b}:{b+n-1}]"
def ar(b, n): return f"a[{b}:{b+n-1}]"
XP = {}
FL_E  = WS_FLAG
FL_KV = WS_FLAG + 0x800
FL_H  = WS_FLAG + 0x2800
FL_A  = WS_FLAG + 0x3800
WS_NW = WS_FLAG + 0x4800
SDBG = 60
SPIN_MAX = 1 << 16
OOB = 0x7f000000
XST = 16384; WST = 28672; W0 = 49152
def XS(j): return (j % 3)*XST
L_K = 106496; L_V = L_K + 24576; HS = 1024; TS = 2048
L_Q = L_V + 24576; L_ONES = L_Q + 4096; L_NRM = L_ONES + 2048
L_ONES_SLOW = L_Q
L_CS = 162816; LDS_TOTAL = 163840
W_SLOTS = [0, 32768, 49152, 16384, 65536, 81920, 106496, 122880, 139264]
W_SLOT_OF = {j: W_SLOTS[j % 9] for j in range(18)}
L_RED = 0
S_TOK = 7
S_NONCE = 47
S_OOB = 100
S_RF = 98
S_J = 99
S_P, S_U, S_FB0 = 40, 41, 42
S_SX, S_SQ, S_S1 = 43, 45, 46
S_XE, S_QE, S_1E = 48, 49, 50
S_TBA, S_TBB, S_DX, S_DW, S_SPIN = 51, 52, 53, 54, 55
S_T, S_KK, S_TB, S_G = 64, 65, 66, 67
S_W2, S_WO, S_H, S_A, S_LD, S_XO, S_QT, S_SLOW = 68, 69, 70, 71, 72, 73, 74, 75
S_H0A, S_H0B, S_H2A, S_H2B, S_H3 = 56, 57, 58, 59, 44
V_VX = 8; V_VWQ, V_VF, V_VF2 = 12, 13, 14
V_XA, V_XB = 16, 20
V_SET = 24
V_WA, V_WAH = 72, 80
V_ST = 88
ACC = 128
def acc(sl, ab): return ACC + (sl*2+ab)*16 if sl < 3 else ACC + 96
V_ONE = 240
MFAR = 240; V_KA, V_VA0, V_VA1, V_VINC = 248, 249, 250, 251
V_WD, V_AL, V_TR0, V_SLOT = 252, 253, 254, 255
POLL = 124

class VM:
    def __init__(s, a): s.a = a; s.n = 0; s.m = {}
    def op(s, text, tag=None):
        s.a(text); s.n += sum(1 for l in text.split("\n") if l.strip().startswith(("buffer_", "global_")))
        if tag: s.m[tag] = s.n
    def grp(s, text, tag=None): return lambda: s.op(text, tag)
    def mark(s, tag): s.m[tag] = s.n
    def cnt(s, *tags): return min([s.n - s.m[t] for t in tags] + [63])
    def wait(s, *tags, extra=""): s.a(f"s_waitcnt vmcnt({s.cnt(*tags)}){extra}")

def emit(a, g):
    if callable(g): g()
    else: a(g)
class G:
    def __init__(s, pre, main): s.pre = pre; s.main = main
    def all(s, a):
        if s.pre: a(s.pre)
        emit(a, s.main)
class BG:
    def __init__(s): s.q = deque()
    def add(s, text):
        L = [l.strip().split(" ;")[0] for l in text.split("\n") if l.strip() and not l.strip().startswith(";")]
        i = 0
        while i < len(L):
            if L[i].startswith(("s_cmp", "s_bitcmp")):
                k = i + 1
                while k < len(L) and L[k].startswith("s_cselect"): k += 1
                s.q.append((k - i, "\n".join(L[i:k]))); i = k
            else:
                s.q.append((1, L[i])); i += 1
    def atom(s, fn, cost=2): s.q.append((cost, fn))
    def fill(s, a, budget):
        while s.q and budget > 0:
            c, x = s.q.popleft(); emit(a, x); budget -= c
        return budget
    def drain(s, a): s.fill(a, 10**9)
    def __len__(s): return len(s.q)

def lane0_store(a, sreg_off, vdata, srdn=SWS):
    a(f"""v_mov_b32 v2, 0
s_mov_b64 exec, 1
buffer_store_dword v{vdata}, v2, {srd(srdn)}, s{sreg_off} offen sc1
s_mov_b64 exec, -1""")

SPINS = []
def poll_check(a, vm, tag, name, reload, nonzero=False):
    stamp(a, name + "_pre")
    if tag: vm.wait(tag)
    stamp(a, name + "_1st")
    cmp_ = f"v_cmp_ne_u32 vcc, 0, v{POLL}" if nonzero else f"v_cmp_eq_u32 vcc, s{S_NONCE}, v{POLL}"
    a(f"{cmp_}\ns_cmp_eq_u64 vcc, -1\ns_cbranch_scc0 {name}_spin ; @spin")
    a.label(name + "_ok")
    parts.stampval(a, name + "_n", S_SPIN)
    SPINS.append((name, reload, cmp_))
def emit_spins(a):
    for name, reload, cmp_ in SPINS:
        a.label(name + "_spin")
        a(f"s_mov_b32 s{S_SPIN}, 0")
        a.label(name + "_sp2")
        a("s_sleep 1"); a(reload)
        a(f"""s_waitcnt vmcnt(0)
{cmp_}
s_add_u32 s{S_SPIN}, s{S_SPIN}, 1
s_cmp_eq_u64 vcc, -1
s_cbranch_scc1 {name}_ok ; @ok
s_cmp_lt_u32 s{S_SPIN}, {SPIN_MAX}
s_cbranch_scc1 {name}_sp2 ; @spin
s_branch {name}_ok""")
    SPINS.clear()

def srd_build(dst, src, size):
    return f"s_mov_b32 s{dst}, s{src}\ns_and_b32 s{dst+1}, s{src+1}, 0xffff\ns_mov_b32 s{dst+2}, {hex(size)}\ns_mov_b32 s{dst+3}, 0x20000"

def entry(a, vm):
    a(f"""s_cmp_ge_u32 s2, 256
s_cbranch_scc1 L_end
s_load_dwordx16 s[64:79], s[0:1], 0
s_load_dwordx2 s[80:81], s[0:1], 64
s_getpc_b64 s[36:37]
L_pc0:
v_lshrrev_b32 v2, 6, v0
v_and_b32 v1, 63, v0
s_and_b32 s3, s2, 7
s_lshr_b32 s7, s2, 3
v_readfirstlane_b32 s6, v2
s_and_b32 s4, s3, 1
s_lshl_b32 s4, s4, 3
s_and_b32 s38, s7, 7
s_add_u32 s4, s4, s38
s_lshr_b32 s5, s3, 1
s_lshl_b32 s5, s5, 2
s_lshr_b32 s38, s7, 3
s_add_u32 s5, s5, s38
s_mov_b32 s56, s36
s_and_b32 s57, s37, 0xffff
s_mov_b32 s58, L_end-L_pc0
s_mov_b32 s59, 0x20000
s_lshl_b32 s38, s7, 2
s_add_u32 s38, s38, s6
s_lshl_b32 s38, s38, 10
s_mov_b32 s{S_J}, s7
s_mov_b32 s{S_SPIN}, 0
v_lshlrev_b32 v2, 4, v1""")
    vm.op("buffer_load_dwordx4 v[244:247], v2, s[56:59], s38 offen", "codepf")

def p1_setup(a):
    a(f"""s_lshr_b32 s{S_P}, s6, 1
s_and_b32 s{S_U}, s6, 1
s_lshl_b32 s{S_FB0}, s5, 2
v_lshrrev_b32 v2, 3, v1
v_and_b32 v3, 7, v1
v_lshrrev_b32 v24, 4, v1
v_xor_b32 v24, v3, v24
v_lshlrev_b32 v24, 4, v24
v_lshl_add_u32 v{V_VX}, v2, 10, v24
v_xor_b32 v25, 64, v{V_VX}
v_add_u32 v{V_VX+1}, 0x2000, v25
v_add_u32 v{V_VX+2}, 0x4000, v{V_VX}
v_add_u32 v{V_VX+3}, 0x6000, v25
v_bfe_u32 v24, v1, 4, 1
v_lshlrev_b32 v24, 2, v24
v_xor_b32 v24, v3, v24
v_lshlrev_b32 v24, 4, v24
v_mul_u32_u24 v25, 0xe00, v2
v_add_u32 v{V_VF}, v25, v24
v_add_u32 v{V_VF2}, {8*3584}, v{V_VF}
v_lshrrev_b32 v2, 2, v1
v_and_b32 v3, 3, v1
v_lshlrev_b32 v3, 4, v3
v_mul_u32_u24 v25, 0xc00, v2
v_add_u32 v{V_VWQ}, v25, v3
s_lshr_b32 s39, s4, 1
s_lshl_b32 s36, s4, 7
s_lshl_b32 s37, s6, 5
s_add_u32 s36, s36, s37
s_lshl_b32 s36, s36, 10
s_add_u32 s{S_XE}, s36, 1024
s_lshl_b32 s37, s39, 7
s_add_u32 s{S_SX}, s36, s37
s_lshl_b32 s36, s39, 2
s_add_u32 s36, s36, s6
s_mul_i32 s37, s36, {16*3072}
s_lshl_b32 s38, s5, 6
s_add_u32 s{S_SQ}, s37, s38
s_add_u32 s{S_QE}, s38, {512*3072}
s_mul_i32 s37, s36, {16*3584}
s_lshl_b32 s38, s5, 8
s_add_u32 s{S_S1}, s37, s38
s_add_u32 s{S_1E}, s38, {512*3584}
s_cmp_ge_u32 s5, 14
s_cselect_b32 s{S_S1}, {hex(OOB)}, s{S_S1}
s_cselect_b32 s{S_1E}, -1, s{S_1E}
s_lshl_b32 s{S_DX}, s6, 12
s_mul_i32 s{S_DW}, s6, 7168
s_add_u32 s{S_DW}, s{S_DW}, {W0}
s_lshl_b32 s36, s4, 7
s_lshl_b32 s37, s5, 3
s_add_u32 s36, s36, s37
s_lshl_b32 s37, s6, 1
s_add_u32 s{S_TOK}, s36, s37""")

def p1_setup2():
    t = f"""v_and_b32 v2, 31, v1
v_lshrrev_b32 v3, 5, v1
v_bfe_u32 v24, v2, 1, 3
v_xor_b32 v24, v3, v24
v_lshlrev_b32 v24, 4, v24
v_lshl_add_u32 v24, v2, 7, v24
s_lshl_b32 s3, s{S_P}, 1
s_add_u32 s36, s3, s{S_U}
s_xor_b32 s37, s36, 1
s_lshl_b32 s38, s4, 2
s_add_u32 s{S_TBA}, s38, s36
s_add_u32 s{S_TBB}, s38, s37
s_lshl_b32 s36, s36, 12
s_lshl_b32 s37, s37, 12
v_add_u32 v{V_XA}, s36, v24
v_add_u32 v{V_XB}, s37, v24
"""
    for ks in range(1, 4):
        t += f"v_xor_b32 v{V_XA+ks}, {32*ks}, v{V_XA}\nv_xor_b32 v{V_XB+ks}, {32*ks}, v{V_XB}\n"
    t += f"""v_bfe_u32 v24, v1, 2, 2
v_lshl_add_u32 v25, v3, 3, v24
v_lshlrev_b32 v26, 6, v25
v_bfe_u32 v27, v1, 4, 1
v_lshl_add_u32 v26, v27, 5, v26
v_and_b32 v28, 3, v1
v_lshl_add_u32 v26, v28, 3, v26
v_lshlrev_b32 v29, 7, v25
v_lshlrev_b32 v27, 1, v27
v_lshrrev_b32 v30, 1, v28
v_add_u32 v27, v27, v30
v_lshrrev_b32 v24, 1, v24
v_lshlrev_b32 v24, 2, v24
v_xor_b32 v27, v27, v24
v_lshl_add_u32 v29, v27, 4, v29
v_and_b32 v28, 1, v28
v_lshl_add_u32 v29, v28, 3, v29
v_xor_b32 v30, 64, v29
v_add_u32 v{V_WA+6}, {W0+3072+2048}, v30
s_cmp_eq_u32 s{S_U}, 0
s_cselect_b64 s[38:39], -1, 0
"""
    tab = [((26, 0, 256), (29, 3072+2048, 512)),
           ((26, 1024, 256), (26, 2048, 256)),
           ((29, 3072, 512), (30, 3072, 512))]
    for sl, (e0, e1) in enumerate(tab):
        for q in range(2):
            t += f"v_add_u32 v31, {W0+e0[1]+q*e0[2]}, v{e0[0]}\nv_add_u32 v32, {W0+e1[1]+q*e1[2]}, v{e1[0]}\nv_cndmask_b32 v{V_WA+2*sl+q}, v32, v31, s[38:39]\n"
    for i in range(7): t += f"v_add_u32 v{V_WAH+i}, {2*WST}, v{V_WA+i}\n"
    for i in range(4): t += f"v_mov_b32 v{V_ONE+i}, 0x3f803f80\n"
    return t

CSB = ((0, 5), (1, 2), (3, 4))

def p1_dma(vm, j):
    t = f"p1b{j}"; g = []
    def add(pre, main, tag=None):
        if j >= 2 and ((XP.get("noq") and srd(SWQ) in main) or (XP.get("nox") and srd(SX) in main) or (XP.get("nof") and srd(SW1) in main)): main = "s_nop 0"
        g.append(G(pre, vm.grp(main, tag)))
    add(f"s_add_u32 m0, s{S_DX}, {XS(j)}", f"buffer_load_dwordx4 v{V_VX}, {srd(SX)}, s{S_SX} offen lds")
    for i in range(1, 4):
        add("s_addk_i32 m0, 1024", f"buffer_load_dwordx4 v{V_VX+i}, {srd(SX)}, s{S_SX} offen lds")
    add(f"s_add_u32 m0, s{S_DW}, {(j % 3)*WST}", f"buffer_load_dwordx4 v{V_VWQ}, {srd(SWQ)}, s{S_SQ} offen lds")
    add(None, f"buffer_load_dwordx4 v{V_VWQ}, {srd(SWQ)}, s{S_SQ} offen offset:1024 lds")
    add(None, f"buffer_load_dwordx4 v{V_VWQ}, {srd(SWQ)}, s{S_SQ} offen offset:2048 lds")
    add("s_addk_i32 m0, 3072", f"buffer_load_dwordx4 v{V_VF}, {srd(SW1)}, s{S_S1} offen lds")
    add("s_addk_i32 m0, 1024", f"buffer_load_dwordx4 v{V_VF2}, {srd(SW1)}, s{S_S1} offen lds")
    add(f"s_addk_i32 m0, {1024-128}", f"buffer_load_dwordx4 v{V_VF}, {srd(SW1)}, s{S_S1} offen offset:128 lds")
    add("s_addk_i32 m0, 1024", f"buffer_load_dwordx4 v{V_VF2}, {srd(SW1)}, s{S_S1} offen offset:128 lds", t)
    adv = []
    for (s, e, step, span) in ((S_SX, S_XE, 128, 1024), (S_SQ, S_QE, 64*3072, 512*3072), (S_S1, S_1E, 64*3584, 512*3584)):
        adv.append(f"s_add_u32 s{s}, s{s}, {step}\ns_cmp_ge_u32 s{s}, s{e}\ns_cselect_b32 s3, {span}, 0\ns_sub_u32 s{s}, s{s}, s3")
    return g, adv

def p1_reads(j, ks, st):
    b = V_SET + 24*st
    def x(reg, base): return f"ds_read_b128 {vr(reg,4)}, v{base+ks} offset:{XS(j)}"
    hi = (j % 3 == 2)
    def w(blk, q):
        off = (0 if hi else (j % 3)*WST) + ks*7168
        if blk < 3: return f"ds_read_b64_tr_b16 {vr(b+8+4*blk+2*q,2)}, v{(V_WAH if hi else V_WA)+2*blk+q} offset:{off}"
        return f"ds_read_b64_tr_b16 {vr(b+20+2*q,2)}, v{(V_WAH if hi else V_WA)+6} offset:{off+512*q}"
    return [x(b, V_XA), w(0,0), w(0,1), x(b+4, V_XB), w(1,0), w(1,1), w(2,0), w(2,1), w(3,0), w(3,1)]

def p1_mfmas(st, first=False):
    b = V_SET + 24*st
    xa, xb = vr(b,4), vr(b+4,4)
    W = lambda k: vr(b+8+4*k,4)
    out = []
    for sl in range(3):
        for ab, x in ((0, xa), (1, xb)):
            d = vr(acc(sl,ab),16)
            out.append(f"v_mfma_f32_32x32x16_bf16 {d}, {W(sl)}, {x}, {'0' if first else d}")
    d = vr(acc(3,0),16)
    out.append(f"v_mfma_f32_32x32x16_bf16 {d}, {W(3)}, {xa}, {'0' if first else d}")
    return out
def cs_mfmas(st, first):
    b = V_SET + 24*st
    return [f"v_mfma_f32_32x32x16_bf16 {ar(16*k,16)}, {vr(V_ONE,4)}, {vr(b+8+4*k,4)}, {'0' if first else ar(16*k,16)}" for k in range(4)]

CAP = 5
def emit_atomic(a, t):
    a(t); return None
def p1_kstep(a, st, rd, heavy, must, bg, first=False, bar=None, extra=None, early=None, late=None):
    m = p1_mfmas(st, first)
    a("s_waitcnt lgkmcnt(0)")
    rd = list(rd); heavy = list(heavy)
    for i, mm in enumerate(m):
        a(mm); bud = CAP
        if i == 0 and bar: emit(a, bar); bud -= 2
        hv = heavy.pop(0) if (i in (0, 2, 4) and not (i == 0 and bar) and heavy) else None
        if hv and hv.pre: a(hv.pre); bud -= 1 + hv.pre.count("\n")
        n = 0
        while rd and n < 2: a(rd.pop(0)); n += 1; bud -= 1
        if hv: emit(a, hv.main); bud -= 2
        if early and i <= 1: early = emit_atomic(a, early); bud -= 4
        if late and i == 5: late = emit_atomic(a, late); bud -= 4
        if bud > 0: bud = must.fill(a, bud)
        if bud > 0 and not must: bg.fill(a, bud)
    if extra:
        lab, par, mms = extra
        a(f"s_bitcmp{par}_b32 s4, 0\ns_cbranch_scc0 {lab} ; @cs")
        for mm in mms: a(mm)
        a.label(lab)
    for e in heavy: e.all(a)

R0, R1 = 88, 92
def stats_stream(vm):
    L = []
    U = [96, 104]; S = [112, 113]; T = [114, 115]; Q = [116, 117]
    A = lambda t: L.extend(x for x in t.split("\n") if x)
    for k, R in enumerate((R0, R1)):
        for j in range(4): A(f"v_lshlrev_b32 v{U[k]+2*j}, 16, v{R+j}\nv_and_b32 v{U[k]+2*j+1}, 0xffff0000, v{R+j}")
    for k in range(2): A(f"v_add_f32 v{S[k]}, v{U[k]}, v{U[k]+1}")
    for j in range(2, 8):
        for k in range(2): A(f"v_add_f32 v{S[k]}, v{S[k]}, v{U[k]+j}")
    def allred(R):
        for m in ("quad_perm:[1,0,3,2]", "quad_perm:[2,3,0,1]", "row_half_mirror", "row_mirror"):
            for k in range(2): A(f"v_add_f32_dpp v{R[k]}, v{R[k]}, v{R[k]} {m} row_mask:0xf bank_mask:0xf")
        for sw in ("v_permlane16_swap_b32", "v_permlane32_swap_b32"):
            for k in range(2): A(f"v_mov_b32 v{T[k]}, v{R[k]}")
            for k in range(2): A(f"{sw} v{T[k]}, v{R[k]}")
            for k in range(2): A(f"v_add_f32 v{R[k]}, v{R[k]}, v{T[k]}")
    allred(S)
    for k in range(2): A(f"v_mul_f32 v{S[k]}, {f32hex(1/512)}, v{S[k]}")
    for j in range(8):
        for k in range(2): A(f"v_sub_f32 v{U[k]+j}, v{U[k]+j}, v{S[k]}")
    for k in range(2): A(f"v_mul_f32 v{Q[k]}, v{U[k]}, v{U[k]}")
    for j in range(1, 8):
        for k in range(2): A(f"v_fmac_f32 v{Q[k]}, v{U[k]+j}, v{U[k]+j}")
    allred(Q)
    for k in range(2): A(f"v_mov_b32 v{T[k]}, {f32hex(1e-5)}\nv_fmac_f32 v{T[k]}, {f32hex(1/512)}, v{Q[k]}")
    for k in range(2): A(f"v_rsq_f32 v{T[k]}, v{T[k]}")
    A(f"v_mov_b32 v120, v{S[0]}\nv_mov_b32 v122, v{S[1]}\nv_mov_b32 v121, v{T[0]}\nv_mov_b32 v123, v{T[1]}")
    return L
def stats_store(a, vm):
    a(f"s_lshl_b32 s36, s{S_TOK}, 3\nv_mov_b32 v2, 0\ns_mov_b64 exec, 1")
    vm.op(f"buffer_store_dwordx4 v[120:123], v2, {srd(SWS)}, s36 offen offset:{WS_STATS} sc1")
    a("s_mov_b64 exec, -1")

def nonce_read(a):
    a(f"""s_lshr_b32 s36, s2, 3
s_or_b32 s36, s36, s6
s_cmp_eq_u32 s36, 0
s_cbranch_scc0 L_nn1 ; @nz
v_mov_b32 v4, 0
s_mov_b32 s36, {WS_NW}
buffer_load_dword v126, v4, {srd(SWS)}, s36 offen sc1""")
    a.label("L_nn1")
def nonce_offer(a):
    a(f"""s_lshr_b32 s36, s2, 3
s_or_b32 s36, s36, s6
s_cmp_eq_u32 s36, 0
s_cbranch_scc0 L_nn2 ; @nz
v_add_u32 v2, 1, v126
v_max_u32 v2, 1, v2
v_mov_b32 v3, 0
v_mov_b32 v4, 0
s_mov_b64 exec, 1
buffer_atomic_cmpswap v[2:3], v4, {srd(SDBG)}, 0 offen sc1
s_mov_b64 exec, -1""")
    a.label("L_nn2")
GO_LD = f"v_mov_b32 v2, 0\nbuffer_load_dword v{POLL}, v2, {srd(SDBG)}, 0 offen sc1"
def nonce_take(a, vm):
    poll_check(a, vm, None, "L_go", GO_LD, nonzero=True)
    a(f"v_readfirstlane_b32 s{S_NONCE}, v{POLL}")

def cs_stream(q, vm):
    q.add(f"""v_accvgpr_read_b32 v118, a0
v_accvgpr_read_b32 v119, a16
v_accvgpr_read_b32 v126, a32
v_accvgpr_read_b32 v127, a48
s_lshl_b32 s78, s4, 4
s_add_u32 s78, s78, s5
s_lshl_b32 s78, s78, 10
s_add_u32 s78, s78, {WS_CS}
s_cmp_eq_u32 s{S_P}, 0
s_cselect_b32 s78, s78, {hex(OOB)}
v_and_b32 v117, 31, v1
v_lshlrev_b32 v117, 2, v117""")
    for sl, reg in ((0, 118), (1, 119), (2, 126)):
        q.add(f"s_mul_i32 s79, s{S_U}, {(CSB[sl][1]-CSB[sl][0])*128}\ns_add_u32 s79, s79, {CSB[sl][0]*128}\ns_add_u32 s79, s79, s78")
        q.atom(vm.grp(f"buffer_store_dword v{reg}, v117, {srd(SWS)}, s79 offen sc1"), 1)
    q.atom(vm.grp(f"buffer_store_dword v127, v117, {srd(SWS)}, s78 offen offset:768 sc1", "csst"), 1)
def early_flag(a):
    a(f"""s_lshl_b32 s36, s4, 4
s_add_u32 s36, s36, s5
s_lshl_b32 s36, s36, 3
s_add_u32 s36, s36, {FL_E}
s_cmp_eq_u32 s6, 0
s_cselect_b32 s36, s36, {hex(OOB)}
v_mov_b32 v4, s{S_NONCE}
v_mov_b32 v5, 0
v_mov_b32 v2, 0
s_mov_b64 exec, 1
buffer_store_dwordx2 v[4:5], v2, {srd(SWS)}, s36 offen sc1
s_mov_b64 exec, -1""")
def nonce_keep(a):
    a(f"""s_or_b32 s36, s2, s6
s_cmp_eq_u32 s36, 0
s_cselect_b32 s36, {WS_NW}, s{S_OOB}
v_mov_b32 v4, s{S_NONCE}
v_mov_b32 v2, 0
s_mov_b64 exec, 1
buffer_store_dword v4, v2, {srd(SWS)}, s36 offen sc1
s_mov_b64 exec, -1""")
def early_poll_load():
    return f"""v_and_b32 v2, 15, v1
s_lshl_b32 s36, s4, 4
v_add_u32 v3, s36, v2
v_lshlrev_b32 v4, 4, v2
v_add_u32 v4, s5, v4
v_bfe_u32 v5, v1, 4, 1
v_cmp_eq_u32 vcc, 1, v5
s_mov_b32 s36, {FL_E}
v_cndmask_b32 v3, v3, v4, vcc
v_lshlrev_b32 v3, 3, v3
buffer_load_dword v{POLL}, v3, {srd(SWS)}, s36 offen sc1"""
def l2_touch(q, vm):
    q.add(f"""s_lshr_b32 s78, s{S_J}, 3
s_lshl_b32 s78, s78, 2
s_add_u32 s78, s78, s6
s_mul_i32 s79, s78, {112*1024}
s_lshl_b32 s77, s{S_G}, 7
s_add_u32 s79, s79, s77
v_lshlrev_b32 v114, 10, v1""")
    q.atom(vm.grp(f"buffer_load_dword v125, v114, {srd(SW2)}, s79 offen"), 2)
    q.add("s_add_u32 s79, s79, 65536")
    q.atom(vm.grp(f"buffer_load_dword v125, v114, {srd(SW2)}, s79 offen"), 2)
    q.add(f"s_lshl_b32 s79, s78, 15\ns_add_u32 s79, s79, s77")
    q.atom(vm.grp(f"buffer_load_dword v125, v114, {srd(SWO)}, s79 offen"), 2)
def gather_loads(q, vm):
    q.add(f"s_lshl_b32 s78, s5, 10\ns_add_u32 s78, s78, {WS_CS}\nv_lshlrev_b32 v112, 2, v0")
    for rr in range(16):
        q.atom(vm.grp(f"buffer_load_dword v{96+rr}, v112, {srd(SWS)}, s78 offen sc1"), 1)
        if rr < 15: q.add("s_add_u32 s78, s78, 16384")
    q.add(f"v_and_b32 v113, 31, v1\nv_lshlrev_b32 v113, 3, v113\ns_lshl_b32 s78, s{S_TBA}, 8\ns_lshl_b32 s79, s{S_TBB}, 8")
    q.atom(vm.grp(f"buffer_load_dwordx2 v[{V_ST}:{V_ST+1}], v113, {srd(SWS)}, s78 offen offset:{WS_STATS} sc1"), 1)
    q.atom(vm.grp(f"buffer_load_dwordx2 v[{V_ST+2}:{V_ST+3}], v113, {srd(SWS)}, s79 offen offset:{WS_STATS} sc1", "gather"), 1)
def gather_sum(q, vm):
    q.atom(lambda: vm.wait("gather"), 1)
    for rr in range(1, 16): q.add(f"v_add_f32 v96, v96, v{96+rr}")
    q.add(f"v_add_u32 v112, {L_CS}, v112\nds_write_b32 v112, v96")

MF_A, CSF = 96, 104
def corr_stream(q):
    q.add(f"v_and_b32 v113, 31, v1\nv_lshlrev_b32 v113, 2, v113\nv_add_u32 v113, {L_CS}, v113")
    for sl in range(3):
        q.add(f"s_mul_i32 s78, s{S_U}, {(CSB[sl][1]-CSB[sl][0])*128}\ns_add_u32 s78, s78, {CSB[sl][0]*128}\nv_add_u32 v112, s78, v113\nds_read_b32 v{120+sl}, v112")
    q.add(f"ds_read_b32 v123, v113 offset:768\nv_cmp_gt_u32_e64 s[76:77], 32, v1")
    for dst, m in ((MF_A, V_ST), (MF_A+4, V_ST+2)):
        q.add(f"""v_cvt_pk_bf16_f32 v{dst}, -v{m}, -v{m}
v_lshlrev_b32 v113, 16, v{dst}
v_sub_f32_e64 v113, -v{m}, v113
v_cvt_pk_bf16_f32 v{dst+1}, v113, 0
v_cndmask_b32 v{dst}, 0, v{dst}, s[76:77]
v_cndmask_b32 v{dst+1}, 0, v{dst+1}, s[76:77]
v_mov_b32 v{dst+2}, 0
v_mov_b32 v{dst+3}, 0""")
def corr_stream2(q):
    for i in range(4):
        dst = CSF + 4*i; cs = 120 + i
        q.add(f"""v_cvt_pk_bf16_f32 v{dst+1}, v{cs}, 0
v_lshlrev_b32 v126, 16, v{dst+1}
v_sub_f32 v126, v{cs}, v126
v_cvt_pk_bf16_f32 v{dst}, v{cs}, v126
v_mov_b32 v{dst+2}, 0
v_mov_b32 v{dst+3}, 0""")
def corr_mfmas(a, order):
    for sl, ab in order:
        d = vr(acc(sl,ab),16)
        a(f"v_mfma_f32_32x32x16_bf16 {d}, {vr(CSF+4*sl,4)}, {vr(MF_A+4*ab,4)}, {d}")

def const_stream(q):
    q.add(srd_build(SWO, 68, 0x80000)); q.add(srd_build(SW2, 74, 0x1C0000)); q.add(srd_build(SOUT, 76, 0x200000))
    q.add("v_and_b32 v112, 31, v1\nv_lshrrev_b32 v113, 5, v1\nv_lshlrev_b32 v113, 2, v113\nv_sub_u32 v113, v113, v112")
    for p in range(8):
        j0 = 8*((2*p) >> 2) + ((2*p) & 3)
        q.add(f"""v_add_u32 v114, {j0}, v113
v_cmp_lt_i32_e64 s[76:77], 0, v114
v_mov_b32 v115, 0xffff
v_add_u32 v114, {j0+1}, v113
v_cndmask_b32 v{MFAR+p}, 0, v115, s[76:77]
v_cmp_lt_i32_e64 s[76:77], 0, v114
v_mov_b32 v115, 0xffff0000
v_mov_b32 v116, 0
v_cndmask_b32 v115, v116, v115, s[76:77]
v_or_b32 v{MFAR+p}, v{MFAR+p}, v115""")
    q.add(f"""v_and_b32 v112, 31, v1
v_lshrrev_b32 v113, 5, v1
v_bfe_u32 v114, v112, 3, 1
v_xor_b32 v113, v113, v114
v_lshl_add_u32 v113, v112, 1, v113
v_lshlrev_b32 v{V_SLOT}, 4, v113
s_add_u32 s78, s6, 8
s_lshl_b32 s78, s78, 11
s_add_u32 s79, s78, {L_K}
v_add_u32 v{V_KA}, s79, v{V_SLOT}
v_bfe_u32 v112, v1, 2, 2
v_lshrrev_b32 v113, 5, v1
v_lshl_add_u32 v112, v113, 2, v112
v_lshlrev_b32 v112, 5, v112
v_and_b32 v114, 1, v1
v_lshl_add_u32 v115, v114, 4, v112
v_bfe_u32 v116, v1, 1, 1
v_lshl_add_u32 v115, v116, 3, v115
v_xor_b32 v116, 16, v115
v_add_u32 v116, 256, v116
s_add_u32 s79, s78, {L_V}
v_add_u32 v115, s79, v115
v_add_u32 v116, s79, v116
v_xor_b32 v113, 1, v113
v_lshlrev_b32 v113, 7, v113
s_add_u32 s79, s6, 8
s_lshl_b32 s79, s79, 3
s_add_u32 s79, s79, {L_ONES}
v_add_u32 v113, s79, v113
v_bfe_u32 v114, v1, 4, 1
v_cmp_eq_u32_e64 s[76:77], 1, v114
v_mov_b32 v117, {hex((1<<32)-TS)}
v_mov_b32 v114, -8
v_cndmask_b32 v{V_VA0}, v115, v113, s[76:77]
v_cndmask_b32 v{V_VA1}, v116, v113, s[76:77]
v_cndmask_b32 v{V_VINC}, v117, v114, s[76:77]""")
    q.add(f"""v_lshrrev_b32 v112, 4, v1
v_and_b32 v113, 15, v1
s_lshl_b32 s78, s4, 2
v_add_u32 v114, s78, v113
v_cmp_le_u32_e64 s[76:77], 8, v114
v_mov_b32 v115, 0x3f803f80
v_lshlrev_b32 v113, 3, v113
v_and_b32 v114, 1, v112
v_cndmask_b32 v116, 0, v115, s[76:77]
v_lshl_add_u32 v113, v114, 7, v113
v_lshrrev_b32 v112, 1, v112
v_lshl_add_u32 v113, v112, 9, v113
v_add_u32 v113, {L_ONES}, v113
v_mov_b32 v117, v116
ds_write_b64 v113, v[116:117]
ds_write_b64 v113, v[116:117] offset:{HS}""")
    q.add(f"""s_and_b32 s{S_T}, s6, 1
s_lshr_b32 s{S_KK}, s6, 1
s_and_b32 s78, s2, 7
s_lshl_b32 s78, s78, 2
s_lshr_b32 s79, s{S_J}, 3
s_add_u32 s78, s78, s79
s_lshr_b32 s{S_RF}, s78, 1
s_lshl_b32 s78, s78, 1
s_add_u32 s{S_TB}, s78, s{S_T}
s_and_b32 s{S_G}, s{S_J}, 7
v_lshrrev_b32 v112, 3, v1
v_and_b32 v113, 7, v1
v_bfe_u32 v114, v1, 4, 1
v_lshlrev_b32 v114, 2, v114
v_xor_b32 v113, v113, v114
v_lshlrev_b32 v113, 4, v113
v_lshl_add_u32 v{V_WD}, v112, 10, v113
v_lshlrev_b32 v{V_AL}, 4, v1
v_bfe_u32 v112, v1, 2, 2
v_lshrrev_b32 v113, 5, v1
v_lshl_add_u32 v113, v113, 2, v112
v_lshlrev_b32 v113, 7, v113
v_bfe_u32 v114, v1, 4, 1
v_lshlrev_b32 v114, 1, v114
v_bfe_u32 v115, v1, 1, 1
v_add_u32 v114, v114, v115
v_lshrrev_b32 v112, 1, v112
v_lshlrev_b32 v112, 2, v112
v_xor_b32 v114, v114, v112
v_lshl_add_u32 v113, v114, 4, v113
v_and_b32 v114, 1, v1
v_lshl_add_u32 v113, v114, 3, v113
s_mul_i32 s78, s{S_KK}, 8192
v_add_u32 v{V_TR0}, s78, v113
s_lshl_b32 s78, s{S_G}, 7
s_lshl_b32 s79, s{S_T}, 13
s_add_u32 s78, s78, s79
s_mul_i32 s79, s{S_KK}, {56*16*1024}
s_add_u32 s{S_W2}, s78, s79
s_sub_u32 s{S_W2}, s{S_W2}, 16384
s_mul_i32 s79, s{S_KK}, {16*16*1024}
s_add_u32 s{S_WO}, s78, s79
s_sub_u32 s{S_WO}, s{S_WO}, 16384
s_mul_i32 s78, s{S_TB}, {112*1024}
s_mul_i32 s79, s{S_KK}, {56*1024}
s_add_u32 s78, s78, s79
s_add_u32 s{S_H}, s78, {WS_H}
s_lshl_b32 s78, s{S_TB}, 15
s_lshl_b32 s79, s{S_KK}, 14
s_add_u32 s78, s78, s79
s_add_u32 s{S_A}, s78, {WS_A}
s_mul_i32 s78, s{S_KK}, 8192
s_lshl_b32 s79, s{S_T}, 10
s_add_u32 s{S_LD}, s78, s79
s_lshl_b32 s{S_QT}, s4, 2
s_add_u32 s{S_QT}, s{S_QT}, s6""")
    q.add(f"""s_mul_i32 s{S_H0A}, s{S_TBA}, {112*1024}
s_mul_i32 s{S_H0B}, s{S_TBB}, {112*1024}
s_lshl_b32 s78, s{S_FB0}, 11
s_add_u32 s78, s78, {WS_H}
s_add_u32 s{S_H0A}, s{S_H0A}, s78
s_add_u32 s{S_H0B}, s{S_H0B}, s78
s_add_u32 s{S_H3}, s{S_H0A}, {3*2048}
s_lshl_b32 s79, s{S_U}, 11
s_add_u32 s{S_H2A}, s{S_H0A}, s79
s_add_u32 s{S_H2B}, s{S_H0B}, s79
s_add_u32 s{S_H0A}, s{S_H0A}, {2*2048}
s_add_u32 s{S_H0B}, s{S_H0B}, {2*2048}
s_cmp_eq_u32 s{S_U}, 0
s_cselect_b32 s{S_H0A}, {hex(OOB)}, s{S_H0A}
s_cselect_b32 s{S_H0B}, {hex(OOB)}, s{S_H0B}
s_cmp_ge_u32 s5, 14
s_cselect_b32 s{S_H0A}, {hex(OOB)}, s{S_H0A}
s_cselect_b32 s{S_H0B}, {hex(OOB)}, s{S_H0B}
s_cselect_b32 s{S_H2A}, {hex(OOB)}, s{S_H2A}
s_cselect_b32 s{S_H2B}, {hex(OOB)}, s{S_H2B}
s_cselect_b32 s{S_H3}, {hex(OOB)}, s{S_H3}""")

def w_stage_groups(vm, j):
    slot = W_SLOT_OF[j]; g = []
    sr, so = (srd(SW2), f"s{S_W2}") if j < 14 else (srd(SWO), f"s{S_WO}")
    for ks in range(4):
        g.append(G(f"s_add_u32 m0, s{S_LD}, {slot + ks*2048}\ns_add_u32 {so}, {so}, 16384",
                   vm.grp(f"buffer_load_dwordx4 v{V_WD}, {sr}, {so} offen lds", f"w{j}" if ks == 3 else None)))
    return g

def prologue(a, vm):
    entry(a, vm)
    p1_setup(a)
    a(p1_setup2())
    a("s_waitcnt lgkmcnt(0)")
    stamp(a, "karg")
    a(srd_build(SWS, 80, WS_SIZE)); a(f"s_mov_b32 s{S_OOB}, {hex(OOB)}")
    nonce_read(a)
    a(srd_build(SX, 64, 0x200000))
    a(f"s_lshl_b32 s36, s{S_TOK}, 10\ns_add_u32 s37, s36, 1024\nv_lshlrev_b32 v2, 4, v1")
    vm.op(f"buffer_load_dwordx4 {vr(R0,4)}, v2, {srd(SX)}, s36 offen")
    vm.op(f"buffer_load_dwordx4 {vr(R1,4)}, v2, {srd(SX)}, s37 offen", "rows")
    a(srd_build(SWQ, 66, 0x180000)); a(srd_build(SW1, 72, 0x1C0000))
    d0, adv0 = p1_dma(vm, 0)
    for g in d0: g.all(a)
    for t in adv0: a(t)
    a(srd_build(SDBG, 78, 256))
    d1, adv1 = p1_dma(vm, 1)
    st = stats_stream(vm)
    vm.wait("rows")
    nonce_offer(a)
    per = (len(st) + 10)//11
    for g in d1:
        g.all(a)
        for x in st[:per]: a(x)
        st = st[per:]
    for t in adv1: a(t)
    stats_store(a, vm)
    stamp(a, "issued")
    vm.wait("p1b0"); a("s_barrier")
    stamp(a, "*b0")
    for r in p1_reads(0, 0, 0): a(r)

def p1_main(a, vm):
    bg = BG(); const_stream(bg)
    pend = None
    for j in range(8):
        H = {0: [], 1: [], 2: [], 3: []}; M = {k: BG() for k in range(4)}
        if j + 2 <= 7:
            if j == 0:
                pend, advn = p1_dma(vm, 2)
                H[0] += pend[0:4]; H[1] += pend[4:8]; H[2] += pend[8:11]
            else:
                H[0] += pend[0:3]; H[1] += pend[3:6]; H[2] += pend[6:9]
            ADV = advn
        else: ADV = None
        if j + 3 <= 7:
            dn2, advn2 = p1_dma(vm, j + 3)
            H[3] += dn2[0:2]; nxt = dn2[2:]
        bar = (lambda jj=j: (vm.wait(f"p1b{jj+1}"), a("s_barrier"))) if j < 7 else None
        if j == 1:
            M[0].atom(lambda: vm.op(GO_LD, "go"), 2)
            cs_stream(M[0], vm)
            bar = (lambda: (vm.wait("p1b2", "csst"), a("s_barrier")))
            LATE3 = lambda: nonce_take(a, vm)
        if j == 2:
            M[0].atom(lambda: early_flag(a), 6)
            M[1].atom(lambda: nonce_keep(a), 6)
        if j == 5: M[0].atom(lambda: vm.op(early_poll_load(), "epoll"), 6)
        if j == 6:
            M[0].atom(lambda: poll_check(a, vm, "epoll", "L_ep", early_poll_load()), 4)
            gather_loads(M[0], vm)
            l2_touch(M[2], vm)
        if j == 7:
            gather_sum(M[0], vm)
            M[1].atom(lambda: a("s_waitcnt lgkmcnt(0)\ns_barrier"), 2)
            corr_stream(M[1]); corr_stream2(M[2])
            w0 = w_stage_groups(vm, 0); w1 = w_stage_groups(vm, 1); w2 = w_stage_groups(vm, 2)
            H[0] += w0[:3]; H[1] += w0[3:] + w1[:2]; H[2] += w1[2:] + w2[:1]; H[3] += w2[1:]
        stamp(a, f"body{j}")
        must = BG()
        for ks in range(4):
            st = ks & 1
            must.q.extend(M[ks].q)
            if ks < 3: rd = p1_reads(j, ks+1, 1-st)
            elif j < 7: rd = p1_reads(j+1, 0, 0)
            else: rd = []
            ex = (f"L_cs{ks}", ks >> 1, cs_mfmas(st, ks % 2 == 0)) if j == 0 else None
            p1_kstep(a, st, rd, H[ks], must, bg if 1 <= j < 6 else BG(), first=(j == 0 and ks == 0), bar=(bar if ks == 3 else None), extra=ex,
                     early=(ADV[ks-1] if (ADV and ks in (1, 2)) else None), late=(ADV[2] if (ADV and ks == 2) else None))
            if ks == 3:
                must.drain(a)
                if j == 1: LATE3()
        if j == 5: bg.drain(a)
        if j + 3 <= 7: pend = nxt; advn = advn2

Q0, Q1 = 8, 12
V_MK, V_MQ, V_MKOWN = 92, 93, 127
def scale_tile(a, accb, sreg, hi):
    sel = "op_sel:[0,1] op_sel_hi:[1,1]" if hi else "op_sel:[0,0] op_sel_hi:[1,0]"
    for r in range(0, 16, 2):
        a(f"v_pk_mul_f32 v[{accb+r}:{accb+r+1}], v[{accb+r}:{accb+r+1}], v[{sreg}:{sreg+1}] {sel}")
def pack_tile(a, accb, dst, relu=False):
    for r in range(8): a(f"v_cvt_pk_bf16_f32 v{dst+r}, v{accb+2*r}, v{accb+2*r+1}")
    if relu:
        for r in range(8): a(f"v_pk_max_i16 v{dst+r}, v{dst+r}, 0")
def norm_tile(a, src, m):
    a(f"v_dot2_f32_bf16 v2, v{src}, v{src}, 0\nv_dot2_f32_bf16 v3, v{src+4}, v{src+4}, 0")
    for i in range(1, 4):
        a(f"v_dot2_f32_bf16 v2, v{src+i}, v{src+i}, v2\nv_dot2_f32_bf16 v3, v{src+4+i}, v{src+4+i}, v3")
    a(f"s_nop 2\nv_max3_f32 v{m}, v{m}, v2, v3")
def allmax2(a, r0, r1, t0, t1):
    R = (r0, r1); T = (t0, t1)
    for m in ("quad_perm:[1,0,3,2]", "quad_perm:[2,3,0,1]", "row_half_mirror", "row_mirror"):
        for k in range(2): a(f"v_max_f32_dpp v{R[k]}, v{R[k]}, v{R[k]} {m} row_mask:0xf bank_mask:0xf")
    for sw in ("v_permlane16_swap_b32", "v_permlane32_swap_b32"):
        for k in range(2): a(f"v_mov_b32 v{T[k]}, v{R[k]}")
        for k in range(2): a(f"{sw} v{T[k]}, v{R[k]}")
        for k in range(2): a(f"v_max_f32 v{R[k]}, v{R[k]}, v{T[k]}")

def p1_epilogue(a, vm):
    corr_mfmas(a, [(1,0), (1,1), (0,0), (0,1), (2,0), (2,1), (3,0)])
    a(f"""s_lshl_b32 s36, s5, 17
s_mul_i32 s38, s{S_U}, {WS_V-WS_K}
s_add_u32 s36, s36, s38
s_add_u32 s36, s36, {WS_K}
s_lshl_b32 s37, s{S_TBA}, 10
s_add_u32 s76, s36, s37
s_lshl_b32 s37, s{S_TBB}, 10
s_add_u32 s77, s36, s37
s_mul_i32 s38, s{S_U}, {L_V-L_K}
s_add_u32 s38, s38, {L_K + 8*TS}
s_and_b32 s36, s{S_TBA}, 3
s_lshl_b32 s36, s36, 11
s_add_u32 s36, s36, s38
v_add_u32 v4, s36, v{V_SLOT}
s_and_b32 s36, s{S_TBB}, 3
s_lshl_b32 s36, s36, 11
s_add_u32 s36, s36, s38
v_add_u32 v5, s36, v{V_SLOT}
v_mul_f32 v94, {f32hex(0.25*LOG2E)}, v{V_ST+1}
v_mul_f32 v95, {f32hex(0.25*LOG2E)}, v{V_ST+3}
v_mov_b32 v{V_MK}, {f32hex(1e-30)}
v_mov_b32 v{V_MQ}, 0""")
    for ab, t in ((0, 24), (1, 32)):
        scale_tile(a, acc(1,ab), V_ST+2*ab, True)
        pack_tile(a, acc(1,ab), t)
        a(f"s_add_u32 s37, s{76+ab}, 65536")
        vm.op(f"buffer_store_dwordx4 {vr(t,4)}, v{V_SLOT}, {srd(SWS)}, s{76+ab} offen sc1")
        vm.op(f"buffer_store_dwordx4 {vr(t+4,4)}, v{V_SLOT}, {srd(SWS)}, s37 offen sc1", "kvst")
        a(f"ds_write_b128 v{4+ab}, {vr(t,4)}\nds_write_b128 v{4+ab}, {vr(t+4,4)} offset:{HS}")
    stamp(a, "kvissued")
    for sl, ab in ((2,0), (2,1), (3,0)): pack_tile(a, acc(sl,ab), acc(sl,ab), relu=True)
    a(f"s_cmp_eq_u32 s{S_U}, 0\ns_cbranch_scc0 L_epi_u1 ; @u1")
    norm_tile(a, 24, V_MK); norm_tile(a, 32, V_MK)
    scale_tile(a, acc(0,0), 94, False); pack_tile(a, acc(0,0), Q0)
    scale_tile(a, acc(0,1), 94, True); pack_tile(a, acc(0,1), 56)
    a(f"""s_lshl_b32 s36, s{S_P}, 11
s_add_u32 s36, s36, {L_Q}
v_add_u32 v4, s36, v{V_AL}
ds_write_b128 v4, v[56:59]
ds_write_b128 v4, v[60:63] offset:1024""")
    norm_tile(a, Q0, V_MQ); norm_tile(a, 56, V_MQ)
    allmax2(a, V_MK, V_MQ, 2, 3)
    a(f"""s_lshl_b32 s36, s{S_P}, 3
s_add_u32 s36, s36, {L_NRM}
v_mov_b32 v4, s36
ds_write_b64 v4, v[{V_MK}:{V_MK+1}]
s_branch L_epi_j""")
    a.label("L_epi_u1")
    for ab in range(2): pack_tile(a, acc(0,ab), acc(0,ab), relu=True)
    a.label("L_epi_j")
    a(f"v_mov_b32 v{V_MKOWN}, v{V_MK}")
    a("s_waitcnt lgkmcnt(0)\ns_barrier")

def h_store_groups(vm, counted=True):
    out = []
    lst = [(acc(2,0), S_H2A), (acc(2,1), S_H2B), (acc(3,0), S_H3), (acc(0,0), S_H0A), (acc(0,1), S_H0B)]
    for k, (t, so) in enumerate(lst):
        for half in range(2):
            txt = f"buffer_store_dwordx4 {vr(t+4*half,4)}, v{V_AL}, {srd(SWS)}, s{so} offen offset:{1024*half} sc1"
            out.append(vm.grp(txt, "hst" if (k == 4 and half == 1) else None) if counted else txt)
    return out

KF0 = 16; VF0 = 24; S0 = 40; P0 = 72; O0 = 88
def kread(h): return f"ds_read_b128 {vr(KF0+4*h,4)}, v{V_KA} offset:{h*HS}"
def vreads(h):
    b = VF0 + 8*h
    return [f"ds_read_b64_tr_b16 {vr(b+4*ks+2*q,2)}, v{V_VA0+q} offset:{h*HS+512*ks}" for ks in range(2) for q in range(2)]
def smfma(h): return f"v_mfma_f32_32x32x16_bf16 {vr(S0+16*h,16)}, {vr(KF0+4*h,4)}, {vr(Q0+4*h,4)}, 0"
def pvmfma(h, ks, first=False):
    return f"v_mfma_f32_32x32x16_bf16 {vr(O0+16*h,16)}, {vr(VF0+8*h+4*ks,4)}, {vr(P0+8*h+4*ks,4)}, {'0' if first else vr(O0+16*h,16)}"
def phase(a, h, mask, M, D, X):
    s = S0 + 16*h; p = P0 + 8*h
    E = [f"v_exp_f32 v{s+r}, v{s+r}" for r in range(16)]
    C = lambda k: f"v_cvt_pk_bf16_f32 v{p+k}, v{s+2*k}, v{s+2*k+1}"
    M = list(M) + [None]*(3-len(M)); D = list(D) + [None]*(5-len(D)); X = list(X)
    seq = ["s_waitcnt lgkmcnt(0)", M[0], E[0], D[0], E[1], D[1], E[2], C(0), E[3], D[2], E[4], C(1), M[1], E[5], D[3], E[6], C(2), E[7], D[4],
           E[8], C(3), M[2], E[9], "X", E[10], C(4), E[11], "X", E[12], C(5), E[13], "X", E[14], C(6), E[15], "X", C(7)]
    for s_ in seq:
        if s_ is None: continue
        if s_ == "X":
            if X: emit(a, X.pop(0))
        else: a(s_)
    for x in X: emit(a, x)
    if mask == "far":
        for k in range(8): a(f"v_and_b32 v{p+k}, v{p+k}, v{MFAR+k}")
    if mask == "diag":
        for k in range(8): a(f"v_bfi_b32 v{p+k}, v{MFAR+k}, 0, v{p+k}")
ADV_K = f"v_add_u32 v{V_KA}, {hex((1<<32)-TS)}, v{V_KA}"
ADV_V = [f"v_add_u32 v{V_VA0}, v{V_VINC}, v{V_VA0}", f"v_add_u32 v{V_VA1}, v{V_VINC}, v{V_VA1}"]

def att_step0(a, vm):
    a(f"""s_cmp_eq_u32 s{S_U}, 0
s_cbranch_scc1 L_qown ; @u0
s_lshl_b32 s36, s{S_P}, 11
s_add_u32 s36, s36, {L_Q}
v_add_u32 v4, s36, v{V_AL}
ds_read_b128 {vr(Q0,4)}, v4
ds_read_b128 {vr(Q1,4)}, v4 offset:1024""")
    a.label("L_qown")
    a(f"v_mov_b32 v4, {L_NRM}\nds_read_b128 v[120:123], v4")
    a(kread(0)); a(kread(1))
    a("s_waitcnt lgkmcnt(0)")
    a(smfma(0))
    a("v_max_f32 v125, v120, v122\nv_max_f32 v126, v121, v123\ns_nop 7")
    phase(a, 0, "diag", [smfma(1)], vreads(0), [])
    phase(a, 1, "diag", [None, pvmfma(0,0,True), pvmfma(0,1)], vreads(1), [])

KVP = 122
def kv_poll_load():
    return f"""v_and_b32 v2, 3, v1
v_bfe_u32 v3, v1, 2, 1
v_add_u32 v3, 1, v3
v_sub_u32 v4, s4, v3
v_lshlrev_b32 v5, 4, v4
v_add_u32 v5, s5, v5
v_lshl_add_u32 v5, v5, 2, v2
v_lshlrev_b32 v5, 3, v5
v_add_u32 v5, {FL_KV - FL_E}, v5
s_lshl_b32 s36, s4, 4
s_add_u32 s36, s36, s5
s_lshl_b32 s36, s36, 3
v_mov_b32 v3, s36
v_cmp_gt_i32 vcc, 0, v4
s_mov_b32 s36, {FL_E}
v_cndmask_b32 v5, v5, v3, vcc
buffer_load_dwordx2 v[{KVP}:{KVP+1}], v5, {srd(SWS)}, s36 offen sc1"""
def wflag_off(base, sh=2):
    return f"s_lshl_b32 s36, s4, 4\ns_add_u32 s36, s36, s5\ns_lshl_b32 s36, s36, 2\ns_add_u32 s36, s36, s6\ns_lshl_b32 s36, s36, {sh}\ns_add_u32 s36, s36, {base}"
def wflag_set(a, base):
    a(wflag_off(base)); a(f"v_mov_b32 v3, s{S_NONCE}"); lane0_store(a, 36, 3)

def att_sync(a, vm):
    vm.wait("kvst")
    stamp(a, "kvdone")
    a(wflag_off(FL_KV, 3))
    a(f"""v_mov_b32 v4, s{S_NONCE}
v_mov_b32 v5, v{V_MKOWN}
v_mov_b32 v2, 0
s_mov_b64 exec, 1
buffer_store_dwordx2 v[4:5], v2, {srd(SWS)}, s36 offen sc1
s_mov_b64 exec, -1""")
    a(f"s_cmp_eq_u32 s6, 0\ns_cbranch_scc0 L_sync_hs ; @w123")
    a(kv_poll_load())
    a(f"""s_waitcnt vmcnt(0)
v_cmp_eq_u32 vcc, s{S_NONCE}, v{KVP}
s_mov_b32 s{S_SPIN}, 0
s_cmp_eq_u64 vcc, -1
s_cbranch_scc1 L_kv_ok ; @ok""")
    a.label("L_kv_spin")
    a("s_sleep 1"); a(kv_poll_load())
    a(f"""s_waitcnt vmcnt(0)
v_cmp_eq_u32 vcc, s{S_NONCE}, v{KVP}
s_add_u32 s{S_SPIN}, s{S_SPIN}, 1
s_cmp_eq_u64 vcc, -1
s_cbranch_scc1 L_kv_ok ; @ok
s_cmp_lt_u32 s{S_SPIN}, {SPIN_MAX}
s_cbranch_scc1 L_kv_spin ; @spin""")
    a.label("L_kv_ok")
    stamp(a, "kvok")
    parts.stampval(a, "L_kv_n", S_SPIN)
    for m in range(2):
        for hd in range(2):
            a(f"""s_lshl_b32 s37, s5, 17
s_lshl_b32 s38, s4, 12
s_add_u32 s37, s37, s38
s_add_u32 s37, s37, {(WS_V if m else WS_K) - 8192 + hd*65536}""")
            for grp, need in ((1, 1), (0, 2)):
                a(f"s_add_u32 s38, s37, {4096*grp}\ns_cmp_ge_u32 s4, {need}\ns_cselect_b32 s39, s38, {hex(OOB)}")
                for i in range(4):
                    kt = 4*grp + i
                    a(f"s_mov_b32 m0, {(L_V if m else L_K) + hd*HS + kt*TS - 1024*i}")
                    a(f"buffer_load_dwordx4 v{V_AL}, {srd(SWS)}, s39 offen offset:{1024*i} sc1 lds")
    for t in h_store_groups(vm, counted=False)[:6]: a(t)
    a(f"""v_max_f32_dpp v{KVP+1}, v{KVP+1}, v{KVP+1} quad_perm:[1,0,3,2] row_mask:0xf bank_mask:0xf
s_nop 1
v_max_f32_dpp v{KVP+1}, v{KVP+1}, v{KVP+1} quad_perm:[2,3,0,1] row_mask:0xf bank_mask:0xf
s_nop 1
v_max_f32_dpp v{KVP+1}, v{KVP+1}, v{KVP+1} row_half_mirror row_mask:0xf bank_mask:0xf
v_max_f32 v{POLL}, v{KVP+1}, v125
v_mul_f32 v{POLL}, v{POLL}, v126
v_mov_b32 v4, {L_NRM+16}
ds_write_b32 v4, v{POLL}
s_waitcnt vmcnt(6) lgkmcnt(0)
s_branch L_sync_j""")
    a.label("L_sync_hs")
    for t in h_store_groups(vm, counted=False): a(t)
    a.label("L_sync_j")
    a("s_barrier")
    vm.mark("hst")
    a(f"""v_mov_b32 v4, {L_NRM+16}
ds_read_b32 v{POLL}, v4
s_waitcnt lgkmcnt(0)
v_cmp_nge_f32 vcc, {f32hex(1024.0)}, v{POLL}
s_cmp_lg_u64 vcc, 0
s_cselect_b32 s{S_SLOW}, 1, 0""")

def h_flag(a, vm):
    vm.wait("hst")
    wflag_set(a, FL_H)
def h_poll_load():
    return f"s_lshl_b32 s36, s{S_RF}, 8\ns_add_u32 s36, s36, {FL_H}\nv_lshlrev_b32 v2, 2, v1\nbuffer_load_dword v{POLL}, v2, {srd(SWS)}, s36 offen sc1"
def h_load(vm, i):
    return vm.grp(f"buffer_load_dwordx4 {ar(4*i,4)}, v{V_AL}, {srd(SWS)}, s{S_H} offen sc1\ns_add_u32 s{S_H}, s{S_H}, 1024", f"h{i}")

class AP:
    wpf = (1, 2)
    hflag = 3; hpoll = 5; hchk = 6

def att_rest(a, vm):
    a(f"s_cmp_lg_u32 s{S_SLOW}, 0\ns_cbranch_scc1 L_slow ; @slow")
    a(ADV_K); a(ADV_V[0]); a(ADV_V[1])
    a(kread(0)); a(kread(1))
    a("s_waitcnt lgkmcnt(0)")
    a(smfma(0)); a(ADV_K)
    hq = [h_load(vm, i) for i in range(56)]
    wq = []
    for j in (3, 4, 5): wq += [(lambda g=g: g.all(a)) for g in w_stage_groups(vm, j)]
    for s in range(1, 9):
        mask = "far" if s == 8 else None
        stamp(a, f"as{s}")
        XA, XB = [], []
        if s in AP.wpf: XA += wq[:3]; XB += wq[3:6]; wq = wq[6:]
        if s == AP.hflag: XA.append(lambda: h_flag(a, vm))
        if s == AP.hpoll: XB.append(lambda: vm.op(h_poll_load(), "hpoll"))
        if s == AP.hchk: XA.append(lambda: poll_check(a, vm, "hpoll", "L_hp", h_poll_load()))
        if s >= AP.hchk:
            n = 4
            if s == AP.hchk: take = hq[:n]; hq = hq[n:]; XB += take
            else: take = hq[:2*n]; hq = hq[2*n:]; XA += take[:n]; XB += take[n:]
        last = (s == 8)
        MA = [smfma(1), pvmfma(1,0, first=(s == 1)), pvmfma(1,1)]
        phase(a, 0, mask, MA, vreads(0) + ([] if last else [kread(0)]), XA)
        MB = [None if last else smfma(0), pvmfma(0,0), pvmfma(0,1)]
        phase(a, 1, mask, MB, vreads(1) + ([] if last else [kread(1)]), ([ADV_K, ADV_V[0], ADV_V[1]] + XB) if not last else XB)
    for g in wq: g()
    a("s_waitcnt lgkmcnt(0)\ns_nop 1")
    a(pvmfma(1, 0)); a(pvmfma(1, 1))
    a.label("L_att_fin")
    return hq

def att_finish(a, vm):
    for h in range(2):
        o = O0 + 16*h
        a(f"v_rcp_f32 v{2+h}, v{o+8}")
        for r in range(8): a(f"v_mul_f32 v{o+r}, v{o+r}, v{2+h}")
        for k in range(4): a(f"v_cvt_pk_bf16_f32 v{72+4*h+k}, v{o+2*k}, v{o+2*k+1}")
    a(f"s_lshl_b32 s36, s{S_QT}, 15\ns_lshl_b32 s37, s5, 11\ns_add_u32 s36, s36, s37\ns_add_u32 s36, s36, {WS_A}")
    vm.op(f"buffer_store_dwordx4 v[72:75], v{V_AL}, {srd(SWS)}, s36 offen sc1")
    vm.op(f"buffer_store_dwordx4 v[76:79], v{V_AL}, {srd(SWS)}, s36 offen offset:1024 sc1", "astores")

def att_slow(a, vm, nh):
    import k2
    k2.L.K, k2.L.V, k2.L.HS, k2.L.TS, k2.L.ONES = L_K, L_V, HS, TS, L_ONES_SLOW
    k2.S_QT, k2.S_NMID, k2.S_FAR, k2.S_CNT2 = S_QT, 76, 77, 78
    a.label("L_slow")
    a("s_waitcnt vmcnt(0)")
    wflag_set(a, FL_H)
    vmx = VM(a)
    for j in (3, 4, 5):
        for g in w_stage_groups(vmx, j): g.all(a)
    k2.att_consts(a); k2.att_counts(a)
    a("s_waitcnt lgkmcnt(0)")
    k2.att_pass1(a); k2.att_pass2(a)
    a(f"s_mov_b32 s{S_SPIN}, 0")
    a.label("L_slow_hp")
    a(h_poll_load())
    a(f"""s_waitcnt vmcnt(0)
v_cmp_eq_u32 vcc, s{S_NONCE}, v{POLL}
s_add_u32 s{S_SPIN}, s{S_SPIN}, 1
s_cmp_eq_u64 vcc, -1
s_cbranch_scc1 L_slow_hok ; @ok
s_sleep 1
s_cmp_lt_u32 s{S_SPIN}, {SPIN_MAX}
s_cbranch_scc1 L_slow_hp ; @spin""")
    a.label("L_slow_hok")
    for i in range(nh):
        a(f"buffer_load_dwordx4 {ar(4*i,4)}, v{V_AL}, {srd(SWS)}, s{S_H} offen sc1\ns_add_u32 s{S_H}, s{S_H}, 1024")
    a("s_waitcnt vmcnt(0)\ns_nop 7\ns_nop 7\ns_branch L_att_fin")

WF = 16; YA, SA = 40, 72; V_X, V_STAT = 104, 112; V_OA = 12
V_TRN = [[8, 9], [10, 11], [13, 14]]
NST = 18; NK = 72
def p3_wreads(n):
    j, ks = divmod(n, 4); st = n % 3
    off = W_SLOT_OF[j] + ks*2048; out = []
    for nb in range(2):
        for q in range(2):
            o = off + q*1024
            out.append(f"ds_read_b64_tr_b16 {vr(WF+8*st+4*nb+2*q,2)}, v{V_TRN[o >> 16][nb]} offset:{o & 0xffff}")
    return out
def act_reg(n):
    if n < 56: return 4*n
    i = n - 56
    return 224 + 4*i if i < 8 else 4*(i-8)
def p3_mf(n):
    st = n % 3; accb = YA if n < 56 else SA; first = n in (0, 56)
    return [f"v_mfma_f32_32x32x16_bf16 {vr(accb+16*nb,16)}, {vr(WF+8*st+4*nb,4)}, {ar(act_reg(n),4)}, {'0' if first else vr(accb+16*nb,16)}" for nb in range(2)]
def a_poll_load():
    return f"s_lshl_b32 s36, s{S_RF}, 8\ns_add_u32 s36, s36, {FL_A}\nv_lshlrev_b32 v2, 2, v1\nbuffer_load_dword v{POLL}, v2, {srd(SWS)}, s36 offen sc1"
def a_flag(a, vm):
    vm.wait("astores")
    wflag_set(a, FL_A)
def final_loads(a, vm):
    a(f"v_and_b32 v2, 31, v1\ns_lshl_b32 s36, s{S_TB}, 5\nv_add_u32 v2, s36, v2\nv_lshlrev_b32 v3, 3, v2")
    vm.op(f"buffer_load_dwordx2 v[{V_STAT}:{V_STAT+1}], v3, {srd(SWS)}, 0 offen offset:{WS_STATS} sc1")
    a(f"""v_lshlrev_b32 v2, 10, v2
v_lshrrev_b32 v3, 5, v1
v_lshl_add_u32 v{V_OA}, v3, 3, v2
s_lshl_b32 s36, s{S_G}, 7
s_lshl_b32 s37, s{S_KK}, 6
s_add_u32 s{S_XO}, s36, s37""")
    for q in range(4):
        vm.op(f"buffer_load_dwordx2 v[{V_X+2*q}:{V_X+2*q+1}], v{V_OA}, {srd(SX)}, s{S_XO} offen offset:{16*q}", "xfin" if q == 3 else None)

class PP: rate = 3; aflag = 3; apoll = 30; achk = 36

def p3_main(a, vm, hq):
    a(f"v_mov_b32 v8, v{V_TR0}\nv_xor_b32 v9, 64, v{V_TR0}\nv_add_u32 v10, 0x10000, v8\nv_add_u32 v11, 0x10000, v9\nv_add_u32 v13, 0x20000, v8\nv_add_u32 v14, 0x20000, v9")
    vm.wait("w0"); a("s_barrier")
    for r in p3_wreads(0) + p3_wreads(1): a(r)
    items = []
    nh0 = 56 - len(hq)
    for i, g in enumerate(hq): items.append([0, nh0 + i, "h", g])
    for j in range(6, 18):
        avail = 0 if j < 9 else 4*(j-8) + 2
        for k, g in enumerate(w_stage_groups(vm, j)): items.append([avail, 4*j - 4 + k*0.1, "w", (lambda g=g: g.all(a))])
    for i in range(16):
        reg = 224 + 4*i if i < 8 else 4*(i-8)
        items.append([PP.achk, 56 + i, "a", vm.grp(f"buffer_load_dwordx4 {ar(reg,4)}, v{V_AL}, {srd(SWS)}, s{S_A} offen sc1\ns_add_u32 s{S_A}, s{S_A}, 1024", f"at{i}")])
    for n in range(NK):
        j, ks = divmod(n, 4)
        if ks == 0 and parts.STAMPS:
            before = len(parts.NAMES); stamp(a, f"st{j}")
            if len(parts.NAMES) > before: a("s_waitcnt lgkmcnt(0)")
        tag = f"h{n}" if n < 56 else f"at{n-56}"
        vm.wait(tag, extra=f" lgkmcnt({4 if n < NK-1 else 0})")
        m = p3_mf(n)
        nx = p3_wreads(n+2) if n + 2 < NK else []
        if ks == 2 and j + 1 < NST:
            vm.wait(f"w{j+1}"); a("s_barrier")
        a(m[0])
        for r in nx[:2]: a(r)
        a(m[1])
        for r in nx[2:]: a(r)
        if n == PP.aflag: a_flag(a, vm)
        if n == 8: final_loads(a, vm)
        if n == PP.apoll: vm.op(a_poll_load(), "apoll")
        if n == PP.achk: poll_check(a, vm, "apoll", "L_ap", a_poll_load())
        for _ in range(PP.rate):
            cand = [it for it in items if it[0] <= n]
            firsts = {}
            for it in items:
                if it[2] not in firsts: firsts[it[2]] = it
            cand = [it for it in firsts.values() if it[0] <= n]
            if not cand: break
            it = min(cand, key=lambda x: x[1]); items.remove(it); it[3]()
    assert not items, len(items)

def final(a, vm):
    vm.wait("xfin")
    a("s_barrier")
    a(f"""s_lshl_b32 s36, s{S_T}, 1
s_xor_b32 s37, s{S_KK}, 1
s_add_u32 s37, s37, s36
s_lshl_b32 s37, s37, 13
s_add_u32 s36, s36, s{S_KK}
s_lshl_b32 s36, s36, 13
v_lshlrev_b32 v2, 4, v1
v_add_u32 v3, s37, v2
v_add_u32 v4, s36, v2
s_cmp_eq_u32 s{S_KK}, 0
s_cbranch_scc0 L_fin_w1 ; @kk1""")
    def wr(nb):
        for i in range(4): a(f"ds_write_b128 v3, {vr(YA+16*nb+4*i,4)} offset:{L_RED+1024*i}")
        for i in range(4): a(f"ds_write_b128 v3, {vr(SA+16*nb+4*i,4)} offset:{L_RED+4096+1024*i}")
    wr(1)
    a("s_branch L_fin_w2")
    a.label("L_fin_w1")
    wr(0)
    for i in range(16): a(f"v_mov_b32 v{YA+i}, v{YA+16+i}\nv_mov_b32 v{SA+i}, v{SA+16+i}")
    a.label("L_fin_w2")
    a("s_waitcnt lgkmcnt(0)\ns_barrier")
    T = 120
    for i in range(4): a(f"ds_read_b128 {vr(T+4*i,4)}, v4 offset:{L_RED+1024*i}")
    for i in range(4): a(f"ds_read_b128 {vr(T+16+4*i,4)}, v4 offset:{L_RED+4096+1024*i}")
    a(f"v_mul_f32 v13, {f32hex(-LOG2E)}, v{V_STAT+1}")
    a("s_waitcnt lgkmcnt(4)")
    for i in range(16): a(f"v_add_f32 v{YA+i}, v{YA+i}, v{T+i}")
    for r in range(16): a(f"v_mul_f32 v{T+r}, v{YA+r}, v13")
    a("s_waitcnt lgkmcnt(0)")
    for r in range(16): a(f"v_exp_f32 v{T+r}, v{T+r}\nv_add_f32 v{SA+r}, v{SA+r}, v{T+16+r}")
    for r in range(16): a(f"v_add_f32 v{T+r}, 1.0, v{T+r}\nv_mul_f32 v{SA+r}, v{SA+r}, v{YA+r}")
    for r in range(16): a(f"v_rcp_f32 v{T+r}, v{T+r}\nv_mul_f32 v{SA+r}, v{SA+r}, v{V_STAT+1}")
    for q in range(4):
        for hlf in range(2):
            xr = V_X + 2*q + hlf; r = 4*q + 2*hlf
            a(f"""v_lshlrev_b32 v14, 16, v{xr}
v_and_b32 v15, 0xffff0000, v{xr}
v_fma_f32 v14, v{SA+r}, v{T+r}, v14
v_fma_f32 v15, v{SA+r+1}, v{T+r+1}, v15
v_cvt_pk_bf16_f32 v{xr}, v14, v15""")
        a(f"buffer_store_dwordx2 v[{V_X+2*q}:{V_X+2*q+1}], v{V_OA}, {srd(SOUT)}, s{S_XO} offen offset:{16*q}")

def gen(a):
    vm = VM(a)
    parts.stamp_reset(0); stamp(a, "*start")
    prologue(a, vm)
    p1_main(a, vm)
    stamp(a, "*p1end")
    p1_epilogue(a, vm)
    stamp(a, "*epi")
    att_step0(a, vm)
    stamp(a, "step0")
    att_sync(a, vm)
    stamp(a, "*sync")
    hq = att_rest(a, vm)
    att_finish(a, vm)
    stamp(a, "*att")
    p3_main(a, vm, hq)
    stamp(a, "p3end")
    final(a, vm)
    if parts.STAMPS: a("s_waitcnt vmcnt(0)")
    stamp(a, "*end")
    stamp_flush(a)
    a("s_endpgm")
    att_slow(a, vm, 56 - len(hq))
    emit_spins(a)
    a.label("L_end")
    a("s_endpgm")

def build(out, stamps=False, ins="s_memrealtime"):
    parts.STAMPS = stamps; parts.STAMP_INS = ins
    a = Asm(); gen(a)
    a.lines, nfix = asmlib.fix_hazards(a.lines)
    pr = asmlib.check_hazards(a.lines)
    n = len([l for l in a.lines if not l.endswith(':') and not l.startswith(';')])
    src = header([(None, 256, 256, LDS_TOTAL)]) + kstart(KN+"_kernel") + a.text() + '.section .rodata,"a"\n' + kdesc(KN+"_kernel", 512, 256, 102)
    open(out, "w").write(src)
    print(out, "instrs:", n, "nops inserted:", nfix, "hazards:", len(pr))
    return a
def build_sites(out, sites, ins="s_memrealtime"):
    parts.SITES = set(sites); build(out, True, ins); names = list(parts.NAMES); parts.SITES = None
    open(out + ".names", "w").write(" ".join(names))
SITESETS = {
 "a": ["*start", "karg", "issued", "*b0", "body1", "body3", "body5", "body6"],
 "b": ["*start", "body6", "body7", "*p1end", "kvissued", "*epi", "step0", "kvdone"],
 "c": ["*start", "kvdone", "kvok", "L_kv_n", "*sync", "as2", "as5", "*att"],
 "d": ["*start", "*att", "st1", "st4", "st9", "st14", "p3end", "*end"],
 "e": ["*start", "L_hp_pre", "L_hp_1st", "L_hp_n", "L_ap_pre", "L_ap_1st", "L_ap_n", "*end"],
}
if __name__ == "__main__":
    D = "gen/"
    build(D + "f3.s")
    for k, v in SITESETS.items(): build_sites(D + f"f3_{k}.s", v)
```
